```python
import torch

def _softmax(x, axis=-1):
    return torch.softmax(x, dim=axis)
def _gelu(x):
    return torch.nn.functional.gelu(x, approximate="tanh")
def _silu(x):
    return torch.nn.functional.silu(x)
def _sigmoid(x):
    return torch.sigmoid(x)
def _layernorm(x, axis=-1, eps=1e-5):
    m = x.mean(dim=axis, keepdim=True)
    v = x.var(dim=axis, keepdim=True, unbiased=False)
    return (x - m) / torch.sqrt(v + eps)
def _scatter_add(tgt, idx, src, axis=0):
    return tgt.clone().index_add_(axis, idx, src)
def _segment_sum(src, seg, n):
    out = torch.zeros((n,) + src.shape[1:], dtype=src.dtype)
    return out.index_add_(0, seg, src)
def _pad(x, pw):
    flat = tuple(v for pair in reversed(pw) for v in pair)
    return torch.nn.functional.pad(x, flat)

kernel_name = 'standalone__gqa_block_cached__near_ridge'

def setup_inputs():

    _w = (lambda a: (lambda t: t.to(torch.bfloat16) if t.is_floating_point() else t)(torch.as_tensor(a)))
    B, Sq, D = 8, 48, 1024
    Hq, Hkv, Sk, Dh = 32, 4, 512, 128
    assert Hq % Hkv == 0, (Hq, Hkv)
    return {
        "x": _w((lambda *s: torch.randn(*s, dtype=torch.bfloat16) * 0.8)(B, Sq, D)),
        "k_cache": _w((lambda *s: torch.randn(*s, dtype=torch.bfloat16) * 0.8)(B, Hkv, Sk, Dh)),
        "v_cache": _w((lambda *s: torch.randn(*s, dtype=torch.bfloat16) * 0.05)(B, Hkv, Sk, Dh)),
        "wq": _w((lambda *s: torch.randn(*s, dtype=torch.bfloat16) * 0.8)(D, Hq * Dh) * (D ** -0.5)),
        "wo": _w((lambda *s: torch.randn(*s, dtype=torch.bfloat16) * 0.05)(Hq * Dh, D) * ((Hq * Dh) ** -0.5)),
    }

def reference(x, k_cache, v_cache, wq, wo):
    B, Sq, D = x.shape
    Hq, Dh = 32, 128
    Hkv = k_cache.shape[1]
    rep = Hq // Hkv
    q = (lambda x, *d: x.permute(*d))((x @ wq).reshape(B, Sq, Hq, Dh), 0, 2, 1, 3)
    k = (lambda x, n, axis: torch.repeat_interleave(x, n, dim=axis))(k_cache, rep, axis=1)
    v = (lambda x, n, axis: torch.repeat_interleave(x, n, dim=axis))(v_cache, rep, axis=1)
    scores = torch.einsum("bhqd,bhkd->bhqk", q, k) * (Dh ** -0.5)
    p = _softmax(scores, axis=-1)
    o = torch.einsum("bhqk,bhkd->bhqd", p, v)
    return (lambda x, *d: x.permute(*d))(o, 0, 2, 1, 3).reshape(B, Sq, Hq * Dh) @ wo
```

```python
import re

REG_RE = re.compile(r'^(-?)([vas])(\d+)$|^(-?)([vas])\[(\d+):(\d+)\]$')

def regs_of(op):
    op = op.strip()
    if op.startswith('abs(') or op.startswith('-abs('):
        op = op[op.index('(')+1:-1]
    m = REG_RE.match(op)
    if m:
        if m.group(2):
            return [(m.group(2), int(m.group(3)))]
        return [(m.group(5), i) for i in range(int(m.group(6)), int(m.group(7))+1)]
    if op == 'vcc': return [('s', 'vcc')]
    if op == 'exec': return [('s', 'exec')]
    if op == 'm0': return [('s', 'm0')]
    return []

TRANS = ('v_exp_f32', 'v_log_f32', 'v_rcp_f32', 'v_rsq_f32', 'v_sqrt_f32')

class Ins:
    def __init__(self, text):
        self.text = text
        t = text.split(';')[0].strip()
        parts = t.split(None, 1)
        self.op = parts[0]
        rest = parts[1] if len(parts) > 1 else ''
        ops = [o.strip() for o in rest.split(',')] if rest else []
        self.mods = []
        if ops:
            last = ops[-1].split()
            ops[-1] = last[0]
            self.mods = last[1:]
        self.ops = ops
        op = self.op
        self.cls = 'other'
        self.reads, self.writes = [], []
        self.srcc = []
        self.ab = []
        self.stdata = []
        if op.startswith('v_mfma'):
            self.cls = 'mfma'
            self.writes = regs_of(ops[0])
            self.ab = regs_of(ops[1]) + regs_of(ops[2])
            self.srcc = regs_of(ops[3])
            self.reads = self.ab + self.srcc
        elif op.startswith('ds_read'):
            self.cls = 'ds'
            self.writes = regs_of(ops[0]); self.reads = regs_of(ops[1])
        elif op.startswith('ds_write'):
            self.cls = 'ds'
            self.reads = sum((regs_of(o) for o in ops), [])
        elif op.startswith('buffer_load'):
            self.cls = 'vmem'
            if 'lds' in self.mods:
                self.reads = sum((regs_of(o) for o in ops), []) + [('s', 'm0')]
                self.dma = True
            else:
                self.writes = regs_of(ops[0]); self.reads = sum((regs_of(o) for o in ops[1:]), [])
        elif op.startswith('global_load'):
            self.cls = 'vmem'
            self.writes = regs_of(ops[0]); self.reads = sum((regs_of(o) for o in ops[1:]), [])
        elif op.startswith('buffer_store'):
            self.cls = 'vmem'
            self.reads = sum((regs_of(o) for o in ops), [])
            if op.endswith('x4') or op.endswith('x3'): self.stdata = regs_of(ops[0])
        elif op.startswith('s_load') or op in ('s_memtime', 's_memrealtime'):
            self.cls = 'smem'
            self.writes = regs_of(ops[0]); self.reads = sum((regs_of(o) for o in ops[1:]), [])
        elif op.startswith('v_permlane'):
            self.cls = 'valu'
            self.writes = regs_of(ops[0]) + regs_of(ops[1]); self.reads = list(self.writes)
        elif op.startswith('v_cmp'):
            self.cls = 'valu'
            self.writes = regs_of(ops[0]); self.reads = sum((regs_of(o) for o in ops[1:]), [])
        elif op.startswith('v_add_co') or op.startswith('v_addc_co'):
            self.cls = 'valu'
            self.writes = regs_of(ops[0]) + regs_of(ops[1]); self.reads = sum((regs_of(o) for o in ops[2:]), [])
        elif op.startswith('v_'):
            self.cls = 'valu'
            if ops:
                self.writes = regs_of(ops[0]); self.reads = sum((regs_of(o) for o in ops[1:]), [])
                if op.startswith('v_fmac') or op.startswith('v_writelane'): self.reads += self.writes
        elif op.startswith('s_cmp') or op.startswith('s_cbranch') or op in ('s_branch', 's_barrier', 's_waitcnt', 's_nop', 's_endpgm', 's_sleep', 's_setprio'):
            self.cls = 'salu'
            if op.startswith('s_cmp'): self.reads = sum((regs_of(o) for o in ops), [])
        elif op.startswith('s_'):
            self.cls = 'salu'
            self.writes = regs_of(ops[0]); self.reads = sum((regs_of(o) for o in ops[1:]), [])
            if op.endswith('saveexec_b64'): self.writes += [('s', 'exec')]
        else:
            raise ValueError('unknown op ' + text)
        self.states = 1
        if op == 's_nop': self.states = int(ops[0]) + 1

def need_states(prev, cur):
    n = 0
    pw, cr, cw = set(prev.writes), set(cur.reads), set(cur.writes)
    if prev.cls == 'valu':
        vw = {r for r in pw if r[0] in 'va'}
        sw = {r for r in pw if r[0] == 's'}
        if cur.cls == 'mfma' and vw & cr: n = max(n, 2)
        if cur.op.startswith('v_permlane') and vw & cr: n = max(n, 2)
        if cur.op.startswith('v_readfirstlane') or cur.op.startswith('v_readlane'):
            if vw & cr: n = max(n, 1)
            if sw & cr: n = max(n, 4)
        if prev.op in TRANS and cur.cls != 'salu' and vw & cr: n = max(n, 1)
        if cur.cls == 'vmem' and sw & cr: n = max(n, 5)
        if cur.cls == 'valu' and sw & cr: n = max(n, 2)
        if cur.cls in ('salu', 'smem') and sw & cr: n = max(n, 2)
        if ('s', 'exec') in sw and cur.cls == 'mfma': n = max(n, 4)
        if 'dpp' in cur.text and vw & cr: n = max(n, 2)
    if prev.cls == 'mfma':
        passes = 8 if '32x32' in prev.op else 4
        big = {4: 8, 8: 12}[passes]
        if cur.cls == 'mfma':
            if pw & set(cur.ab): n = max(n, big)
            if pw & set(cur.srcc) and prev.writes != cur.srcc: n = max(n, big - 2)
            if pw & cw and not (pw & set(cur.srcc)): n = max(n, big)
        elif cur.cls in ('valu', 'vmem', 'ds'):
            if pw & (cr | cw): n = max(n, big)
            if set(prev.srcc) & cw: n = max(n, {4: 3, 8: 7}[passes])
    if prev.cls == 'salu' and ('s', 'm0') in pw and cur.cls == 'vmem' and ('s', 'm0') in cr: n = max(n, 1)
    if prev.stdata and set(prev.stdata) & cw: n = max(n, 2)
    return n

class Asm:
    def __init__(self):
        self.out = []
        self.hist = []
        self.vm_issued = 0; self.vm_done = 0
        self.lg_issued = 0; self.lg_done = 0
        self.pend = {}
        self.sm_pending = False
        self.nops = 0
    def raw(self, text):
        self.out.append(text)
    def comment(self, text):
        self.out.append('; ' + text)
    def label(self, name):
        self.out.append(name + ':')
    def _emit(self, ins):
        self.out.append('    ' + ins.text)
        self.hist.append(ins)
        if len(self.hist) > 24: self.hist.pop(0)
    def wait(self, vm=None, lg=None):
        parts = []
        if vm is not None and vm >= self.vm_done:
            n = min(self.vm_issued - 1 - vm, 63)
            parts.append(f'vmcnt({n})'); self.vm_done = self.vm_issued - n
        if lg is not None and lg >= self.lg_done:
            n = min(self.lg_issued - 1 - lg, 15)
            parts.append(f'lgkmcnt({n})'); self.lg_done = self.lg_issued - n
            if n == 0: self._sm_clear()
        if parts: self._emit(Ins('s_waitcnt ' + ' '.join(parts)))
    def _sm_clear(self):
        self.sm_pending = False
        for r in [r for r, p in self.pend.items() if p[0] == 'sm']: del self.pend[r]
    def wait_lg0(self):
        if self.lg_done < self.lg_issued or self.sm_pending:
            self._emit(Ins('s_waitcnt lgkmcnt(0)')); self.lg_done = self.lg_issued; self._sm_clear()
    def wait_lds(self):
        self.wait(lg=self.lg_issued - 1)
    def wait_vm0(self):
        self.wait(vm=self.vm_issued - 1)
    def __call__(self, text):
        last = None
        for line in text.strip().split('\n'):
            line = line.strip()
            if line: last = self.ins(line)
        return last
    def ins(self, text):
        ins = Ins(text)
        vm = lg = None; sm = False
        for r in ins.reads + ins.writes:
            p = self.pend.get(r)
            if p:
                if p[0] == 'vm' and p[1] >= self.vm_done: vm = p[1] if vm is None else max(vm, p[1])
                if p[0] == 'lg' and p[1] >= self.lg_done: lg = p[1] if lg is None else max(lg, p[1])
                if p[0] == 'sm': sm = True
        if sm:
            self.wait(vm=vm); self.wait_lg0()
        else:
            self.wait(vm=vm, lg=lg)
        dist = 0; need = 0
        for prev in reversed(self.hist):
            k = need_states(prev, ins) - dist
            need = max(need, k)
            dist += prev.states
            if dist >= 20: break
        while need > 0:
            k = min(need, 16)
            self._emit(Ins(f's_nop {k-1}')); need -= k; self.nops += 1
        self._emit(ins)
        tok = None
        if ins.cls == 'vmem':
            tok = self.vm_issued; self.vm_issued += 1
            assert self.vm_issued - self.vm_done <= 63, 'vmcnt overflow'
            for r in ins.writes: self.pend[r] = ('vm', tok)
        elif ins.cls == 'ds':
            tok = self.lg_issued; self.lg_issued += 1
            for r in ins.writes: self.pend[r] = ('lg', tok)
        elif ins.cls == 'smem':
            self.sm_pending = True
            for r in ins.writes: self.pend[r] = ('sm', 0)
        return tok
    def text(self):
        return '\n'.join(self.out) + '\n'

def interleave(main, fill, start=0, every=1, per=1):
    out = []; fi = 0
    for i, m in enumerate(main):
        out.append(m)
        if i >= start and (i - start) % every == 0:
            for _ in range(per):
                if fi < len(fill): out.append(fill[fi]); fi += 1
    out += fill[fi:]
    return out

def spread(main, fill):
    out = []; n, m = len(main), len(fill); fi = 0
    for i, x in enumerate(main):
        out.append(x)
        tgt = (i + 1) * m // n
        while fi < tgt: out.append(fill[fi]); fi += 1
    return out
```

```python
import sys, math, struct
sys.path.insert(0, 'gen')
from asmlib import *

NAME = 'standalone__gqa_block_cached__near_ridge'
HEADER = open('cdna_kernels/%s.s.ref' % NAME).read().split('; Override')[0]

WS_EPOCH = 0
WS_FL = 0x1000
WS_QX = 0x10000
WS_OX = 0x900000
WS_FX = 0xC00000
WS_ST = 0x1400000
SPIN_MAX = 1 << 16

K16 = 16384
PSLOT = 28672
R1 = 7 * K16
QBUF = R1 + 4096
PBUF = R1
LSTAT = 4 * K16
RBUF = 8 * K16

sX, sWQ, sK, sV, sWO, sWS, sOUT = 20, 24, 28, 32, 36, 40, 44
sG, sKH, sP, sHH, sW, sB, sH, sN = 48, 49, 50, 51, 52, 53, 54, 55
sW3k, sW4k, sRot1, sRotW, sC, sO1, sO2, sT0, sT1, sCnt, sSc = 56, 57, 58, 59, 60, 61, 62, 63, 64, 65, 66
sM0, sM1 = 68, 70
sST = 72

def srd(n): return f's[{n}:{n+3}]'
def vr(a, n=4): return f'v[{a}:{a+n-1}]'
def ar(a, n=4): return f'a[{a}:{a+n-1}]'

def gen(stamps=False, dump=None):
    A = Asm()
    nst = [0]; stn = []
    def stamp(name):
        if stamps:
            assert nst[0] < 14
            A(f's_memtime s[{sST+2*nst[0]}:{sST+2*nst[0]+1}]'); nst[0] += 1; stn.append(name)
    def emit(items):
        for it in items:
            if callable(it): it()
            else: A(it)
    nbar = [0]
    def barrier():
        A('s_barrier'); nbar[0] += 1

    A.raw(HEADER.rstrip())
    A.raw('; @launch grid=(256,1,1) block=(256,1,1) lds=163840')
    A.raw('.amdgcn_target "amdgcn-amd-amdhsa--gfx950"\n.text\n.globl %s_kernel\n.p2align 8\n.type %s_kernel,@function\n%s_kernel:' % (NAME, NAME, NAME))
    A('s_cmp_ge_u32 s2, 256')
    A('s_cbranch_scc1 L_end')
    A('s_load_dwordx16 s[4:19], s[0:1], 0')
    if stamps:
        A('s_memrealtime s[100:101]')
    stamp('start')
    A(f'''v_lshrrev_b32 v3, 6, v0
    v_and_b32 v1, 63, v0
    v_readfirstlane_b32 s{sW}, v3
    s_and_b32 s{sKH}, s2, 1
    s_bfe_u32 s{sG}, s2, 0x20001
    s_bfe_u32 s{sHH}, s2, 0x30003
    s_lshr_b32 s{sP}, s2, 6
    s_lshl_b32 s{sB}, s{sP}, 1
    s_add_u32 s{sB}, s{sB}, s{sKH}
    s_lshl_b32 s{sH}, s{sG}, 3
    s_add_u32 s{sH}, s{sH}, s{sHH}
    s_add_u32 s{sRot1}, s{sP}, s{sHH}
    s_and_b32 s{sRot1}, s{sRot1}, 3
    s_lshl_b32 s{sRot1}, s{sRot1}, 1
    s_lshl_b32 s{sRotW}, s{sP}, 1
    s_add_u32 s{sRotW}, s{sRotW}, s{sHH}
    s_mul_i32 s{sW3k}, s{sW}, 3072
    s_lshl_b32 s{sW4k}, s{sW}, 12
    v_lshlrev_b32 v2, 4, v1
    v_lshrrev_b32 v4, 4, v1
    v_lshrrev_b32 v5, 3, v1
    v_and_b32 v6, 7, v1
    v_and_b32 v7, 15, v1''')
    vQD, vL3, vL7, vL15 = 4, 5, 6, 7
    vDX, vDW, vRX, vRW = 224, 227, 231, 235
    vDK, vRK, vDV, vWQ, vRQ = 239, 243, 247, 249, 251
    A(f'''s_lshr_b32 s{sT0}, s{sW}, 1
    s_xor_b32 s{sT0}, s{sT0}, s{sB}
    s_lshl_b32 s{sT0}, s{sT0}, 1
    s_and_b32 s{sT1}, s{sW}, 1
    s_add_u32 s{sT0}, s{sT0}, s{sT1}
    s_mul_i32 s{sT0}, s{sT0}, {24*2048}
    s_lshl_b32 s{sC}, s{sKH}, 10
    s_add_u32 s{sT0}, s{sT0}, s{sC}
    s_lshl_b32 s{sT1}, s{sT1}, 2
    v_xor_b32 v8, v{vL7}, v{vQD}
    v_xor_b32 v8, s{sT1}, v8
    v_lshlrev_b32 v8, 4, v8
    v_lshl_add_u32 v8, v{vL3}, 11, v8
    v_add_u32 v{vDX}, s{sT0}, v8
    v_xor_b32 v9, 64, v{vDX}
    v_add_u32 v{vDX+1}, {8*2048-1024}, v9
    v_add_u32 v{vDX+2}, {16*2048-2048}, v{vDX}''')
    A(f'''s_lshl_b32 s{sT0}, s{sKH}, 5
    s_add_u32 s{sT0}, s{sT0}, s{sW}
    s_lshl_b32 s{sT0}, s{sT0}, 17
    s_lshl_b32 s{sT1}, s{sH}, 8
    s_add_u32 s{sT0}, s{sT0}, s{sT1}
    v_lshlrev_b32 v8, 1, v{vQD}
    v_xor_b32 v8, v8, v{vL15}
    v_lshlrev_b32 v8, 4, v8
    v_lshl_add_u32 v8, v{vQD}, 13, v8
    v_add_u32 v{vDW}, s{sT0}, v8
    v_add_u32 v{vDW+1}, {4*8192-1024}, v{vDW}
    v_xor_b32 v9, 128, v{vDW}
    v_add_u32 v{vDW+2}, {8*8192-2048}, v9
    v_add_u32 v{vDW+3}, {12*8192-3072}, v9''')
    def mksrd(n, ptr, size):
        A(f's_mov_b32 s{n}, s{ptr}\ns_mov_b32 s{n+1}, s{ptr+1}\ns_mov_b32 s{n+2}, {size}\ns_mov_b32 s{n+3}, 0x20000')
    mksrd(sX, 4, 786432); mksrd(sWQ, 10, 8388608)

    tokP, tokK, tokV, tokW = {}, {}, {}, {}
    def rec(d, k, text):
        def f(): d[k] = A(text)
        return f
    def dmaP(i):
        slot = (i & 3) * PSLOT
        L = [f's_add_u32 s{sC}, s{sRot1}, {i}', f's_and_b32 s{sC}, s{sC}, 7', f's_add_u32 m0, s{sW3k}, {slot}', f's_lshl_b32 s{sO1}, s{sC}, 7']
        L += [f'buffer_load_dwordx4 v{vDX+j}, {srd(sX)}, s{sO1} offen offset:{j*1024} lds' for j in range(3)]
        L += [f's_add_u32 m0, s{sW4k}, {slot+12288}', f's_lshl_b32 s{sO2}, s{sC}, 19']
        L += [rec(tokP, i, f'buffer_load_dwordx4 v{vDW+j}, {srd(sWQ)}, s{sO2} offen offset:{j*1024} lds') for j in range(4)]
        return L
    kslot = lambda n: (8 + n) if n < 2 else n - 2
    vslot = lambda n: (n + 6) % 7
    def dma16(tok, n, slot, rot, shift, s, vregs):
        L = [f's_add_u32 s{sC}, s{rot}, {n}', f's_and_b32 s{sC}, s{sC}, 7', f's_add_u32 m0, s{sW4k}, {slot*K16}', f's_lshl_b32 s{sO1}, s{sC}, {shift}']
        L += [rec(tok, n, f'buffer_load_dwordx4 v{vregs[j]}, {srd(s)}, s{sO1} offen offset:{j*1024} lds') for j in range(4)]
        return L
    vRV, vDO, vST = 224, 232, 236
    dmaK = lambda n: dma16(tokK, n, kslot(n), sHH, 14, sK, [vDK+j for j in range(4)])
    dmaV = lambda n: dma16(tokV, n, vslot(n), sHH, 14, sV, [vDV+(j & 1) for j in range(4)])
    dmaW = lambda n: dma16(tokW, n, n, sRotW, 18, sWO, [vDO+j for j in range(4)])

    emit(dmaP(0)); emit(dmaP(1))
    A(f's_lshl_b32 s{sT0}, s{sP}, 7')
    A(f's_load_dword s{sN}, s[18:19], s{sT0}')
    mksrd(sK, 6, 4194304); mksrd(sV, 8, 4194304); mksrd(sWO, 12, 8388608); mksrd(sWS, 18, 0x10000000); mksrd(sOUT, 14, 786432)
    vR, vC8 = 10, 11
    A(f'''v_bfe_u32 v{vR}, v1, 2, 2
    v_and_b32 v{vC8}, 3, v1
    v_lshlrev_b32 v{vC8}, 3, v{vC8}
    v_lshrrev_b32 v8, 1, v{vL15}
    v_xor_b32 v8, v8, v{vQD}
    v_lshlrev_b32 v8, 4, v8
    v_lshl_add_u32 v{vRX}, v{vL15}, 7, v8
    v_xor_b32 v{vRX+1}, 64, v{vRX}
    v_add_u32 v{vRX+2}, {2*PSLOT}, v{vRX}
    v_add_u32 v{vRX+3}, {2*PSLOT}, v{vRX+1}
    v_and_b32 v8, 1, v{vQD}
    v_lshl_or_b32 v8, v8, 2, v{vR}
    s_lshl_b32 s{sT0}, s{sW}, 1
    v_xor_b32 v8, s{sT0}, v8
    v_lshl_add_u32 v8, v8, 5, v{vC8}
    v_lshl_add_u32 v9, v{vQD}, 3, v{vR}
    v_lshl_add_u32 v{vRW}, v9, 8, v8
    v_xor_b32 v{vRW+1}, 32, v{vRW}
    v_add_u32 v{vRW+2}, {2*PSLOT}, v{vRW}
    v_add_u32 v{vRW+3}, {2*PSLOT}, v{vRW+1}''')
    A(f'''s_lshl_b32 s{sT0}, s{sB}, 2
    s_add_u32 s{sT0}, s{sT0}, s{sG}
    s_lshl_b32 s{sT0}, s{sT0}, 17
    s_add_u32 s{sT0}, s{sT0}, s{sW4k}
    v_lshlrev_b32 v9, 8, v{vQD}
    v_add_u32 v9, s{sT0}, v9
    v_xor_b32 v8, v{vL15}, v{vQD}
    v_lshl_add_u32 v{vDK}, v8, 4, v9
    v_xor_b32 v{vDK+1}, 64, v{vDK}
    v_xor_b32 v{vDK+2}, 128, v{vDK}
    v_xor_b32 v{vDK+3}, 192, v{vDK}
    v_lshlrev_b32 v12, 1, v{vQD}
    v_xor_b32 v12, v12, v{vL15}
    v_lshl_add_u32 v{vDV}, v12, 4, v9
    v_xor_b32 v{vDV+1}, 128, v{vDV}''')
    A(f'''v_lshlrev_b32 v8, 4, v8
    v_lshl_add_u32 v8, v{vL15}, 8, v8
    v_add_u32 v{vRQ}, {QBUF}, v8
    s_add_u32 s{sT0}, s{sW4k}, {8*K16}
    v_add_u32 v{vRK}, s{sT0}, v8''')
    for s in range(1, 4):
        A(f'v_xor_b32 v{vRQ+s}, {64*s}, v{vRQ}\nv_xor_b32 v{vRK+s}, {64*s}, v{vRK}')
    A(f'''v_lshrrev_b32 v8, 1, v{vQD}
    s_lshl_b32 s{sT0}, s{sW}, 2
    v_or_b32 v8, s{sT0}, v8
    v_xor_b32 v8, v8, v{vL15}
    v_lshlrev_b32 v8, 1, v8
    v_and_or_b32 v8, v{vQD}, 1, v8
    v_lshlrev_b32 v8, 3, v8
    v_lshl_add_u32 v8, v{vL15}, 8, v8
    v_add_u32 v{vWQ}, {QBUF}, v8
    v_xor_b32 v{vWQ+1}, 32, v{vWQ}''')
    A(f's_mul_i32 s{sN}, s{sN}, 0x19660d\ns_add_u32 s{sN}, s{sN}, 0x3c6ef35f')
    SB, RB = 128, 160
    for k in range(8): A(f'v_mov_b32 v{SB+4*k+3}, s{sN}')
    stamp('prologue')

    qacc = lambda u, tt: 16 + (u*6+tt)*4
    fx = lambda z, tt: 64 + 32*z + 4*tt
    fw = lambda z, u: 64 + 32*z + 24 + 4*u
    def readsP(i, s):
        slot = i & 3; hi = slot >> 1; off = (slot & 1)*PSLOT
        L = []
        for u in range(2):
            for v in range(2):
                L.append(f'ds_read_b64_tr_b16 {vr(fw(s,u)+2*v,2)}, v{vRW+2*hi+u} offset:{off+12288+(32*s+4*v)*256}')
        for tt in (3, 4, 5, 0, 1, 2):
            L.append(f'ds_read_b128 {vr(fx(s,tt))}, v{vRX+2*hi+s} offset:{off+tt*2048}')
        return L
    def mfmaP(s, first):
        return [f'v_mfma_f32_16x16x32_bf16 {vr(qacc(u,tt))}, {vr(fw(s,u))}, {vr(fx(s,tt))}, {"0" if first else vr(qacc(u,tt))}'
                for tt in (3, 4, 5, 0, 1, 2) for u in range(2)]
    nxt = {0: dmaP(2), 1: dmaP(3), 2: dmaP(4), 3: dmaP(5), 4: dmaP(6), 5: dmaP(7), 6: dmaK(0), 7: dmaK(1)}
    for i in range(8):
        A.wait(vm=tokP[i], lg=A.lg_issued-1)
        barrier()
        if i == 0: stamp('P0 landed')
        if i == 7: stamp('P7 landed')
        a = readsP(i, 0)
        if i > 0: a = interleave(a, mfmaP(1, False), start=1)
        emit(a)
        bq = interleave(mfmaP(0, i == 0), readsP(i, 1))
        emit(spread(bq, nxt[i]))
    emit(mfmaP(1, False))
    sbd = lambda base, f: base + 4*(f//3) + f % 3
    for f in range(24):
        u, tt, r = f//12, (f//4) % 3, f % 4
        A(f'v_mov_b32 v{sbd(SB,f)}, v{qacc(u,3+tt)+r}')
    A(f'''s_lshl_b32 s{sT0}, s2, 2
    s_add_u32 s{sT0}, s{sT0}, s{sW}
    s_lshl_b32 s{sT0}, s{sT0}, 13
    s_add_u32 s{sT0}, s{sT0}, {WS_QX}
    s_add_u32 s{sT1}, s{sT0}, 4096''')
    for k in range(8):
        A(f'buffer_store_dwordx4 {vr(SB+4*k)}, v2, {srd(sWS)}, s{sT0 if k < 4 else sT1} offen offset:{(k&3)*1024} sc1')
    stamp('q sent')
    barrier()
    kf = lambda i, s: (i*4+s)*4
    kvar = [2]
    def readK(n):
        sl = kslot(n); L = []
        if sl >> 2 != kvar[0]:
            d = ((sl >> 2) - kvar[0]) * 65536
            L += [f'v_add_u32 v{vRK+s}, {d & 0xffffffff:#x}, v{vRK+s}' for s in range(4)]
            kvar[0] = sl >> 2
        L.append(lambda: A.wait(vm=tokK[n]))
        L += [f'ds_read_b128 {ar(kf(n,s))}, v{vRK+s} offset:{(sl&3)*K16}' for s in range(4)]
        return L
    A(f'''v_lshl_add_u32 v8, v{vQD}, 2, v{vR}
    v_and_b32 v9, 7, v8
    s_lshl_b32 s{sC}, s{sW}, 1
    v_xor_b32 v9, s{sC}, v9
    v_lshl_add_u32 v9, v9, 5, v{vC8}
    v_lshl_add_u32 v9, v8, 8, v9
    s_add_u32 s{sC}, s{sW4k}, 65536
    v_add_u32 v{vRV}, s{sC}, v9''')
    for j in range(4):
        for e in range(2):
            if j or e: A(f'v_xor_b32 v{vRV+2*j+e}, {j*4096+e*32}, v{vRV}')
    A(f'''s_lshl_b32 s{sC}, s{sG}, 5
    s_add_u32 s{sC}, s{sC}, s{sW}
    s_lshl_b32 s{sC}, s{sC}, 16
    s_lshl_b32 s{sO1}, s{sKH}, 3
    s_add_u32 s{sO1}, s{sO1}, s{sHH}
    s_lshl_b32 s{sO1}, s{sO1}, 7
    s_add_u32 s{sC}, s{sC}, s{sO1}
    v_lshlrev_b32 v9, 1, v{vQD}
    v_xor_b32 v9, v9, v{vL7}
    v_lshlrev_b32 v9, 4, v9
    v_lshl_add_u32 v9, v{vL3}, 11, v9
    v_add_u32 v{vDO}, s{sC}, v9''')
    for j in range(1, 4): A(f'v_add_u32 v{vDO+j}, {j*(16384-1024)}, v{vDO}')
    for n in range(0, 4):
        emit(dmaK(n+2)); emit(readK(n))
    A(f's_xor_b32 s{sT0}, s{sT0}, {1<<15}\ns_xor_b32 s{sT1}, s{sT1}, {1<<15}')
    qloads = [f'buffer_load_dwordx4 {vr(RB+4*k)}, v2, {srd(sWS)}, s{sT0 if k < 4 else sT1} offen offset:{(k&3)*1024} sc1' for k in range(8)]
    emit(qloads)
    emit(dmaK(6)); emit(readK(4)); emit(dmaK(7)); emit(readK(5))
    def tagcheck(bases, lbl, t0=8, t1=9):
        tags = [b+3 for b in bases]
        L = [f'v_min3_u32 v{t0}, v{tags[0]}, v{tags[1]}, v{tags[2]}', f'v_max3_u32 v{t1}, v{tags[0]}, v{tags[1]}, v{tags[2]}']
        rest = tags[3:]
        while len(rest) >= 2:
            L += [f'v_min3_u32 v{t0}, v{t0}, v{rest[0]}, v{rest[1]}', f'v_max3_u32 v{t1}, v{t1}, v{rest[0]}, v{rest[1]}']; rest = rest[2:]
        if rest: L += [f'v_min_u32 v{t0}, v{t0}, v{rest[0]}', f'v_max_u32 v{t1}, v{t1}, v{rest[0]}']
        L += [f'v_cmp_ne_u32 s[{sM0}:{sM0+1}], s{sN}, v{t0}', f'v_cmp_ne_u32 vcc, s{sN}, v{t1}', f's_or_b64 vcc, vcc, s[{sM0}:{sM0+1}]', f's_cbranch_scc1 {lbl}']
        return L
    slow = []
    def slowpath(name, loads, bases):
        B = Asm()
        B.label(f'L_{name}_slow'); B(f's_mov_b32 s{sCnt}, {SPIN_MAX}')
        B.label(f'L_{name}_loop')
        B(f's_sub_u32 s{sCnt}, s{sCnt}, 1\ns_cbranch_scc1 L_{name}_ok')
        for x in loads: B(x)
        B.wait_vm0()
        for x in tagcheck(bases, f'L_{name}_loop'): B(x)
        B(f's_branch L_{name}_ok')
        slow.append(B.text())
    emit(tagcheck([RB+4*k for k in range(8)], 'L_q_slow'))
    A.label('L_q_ok')
    slowpath('q', qloads, [RB+4*k for k in range(8)])
    stamp('q recv')
    for f in range(24):
        u, tt, r = f//12, (f//4) % 3, f % 4
        A(f'v_add_f32 v{qacc(u,tt)+r}, v{qacc(u,tt)+r}, v{sbd(RB,f)}')
    for u in range(2):
        for tt in range(3):
            d = qacc(u, 3+tt)
            A(f'v_cvt_pk_bf16_f32 v{d}, v{qacc(u,tt)}, v{qacc(u,tt)+1}\nv_cvt_pk_bf16_f32 v{d+1}, v{qacc(u,tt)+2}, v{qacc(u,tt)+3}')
            A(f'ds_write_b64 v{vWQ+u}, {vr(d,2)} offset:{tt*4096}')
    emit(dmaV(0)); emit(readK(6))
    A.wait_lds()
    emit(dmaV(1)); emit(readK(7))
    A.wait_lds()
    barrier()
    qf = lambda tt, s: 64 + (tt*4+s)*4
    for s in range(4):
        for tt in range(3):
            A(f'ds_read_b128 {vr(qf(tt,s))}, v{vRQ+s} offset:{tt*4096}')
    emit(dmaV(2))
    stamp('q ready')
    S = lambda i, tt: 128 + (i*3+tt)*4
    vf = lambda m, j, e: 128 + ((m*4+j)*2+e)*4
    vvar = [1]
    def readV(n):
        sl = vslot(n); L = []
        if sl >> 2 != vvar[0]:
            L += [f'v_xor_b32 v{vRV+k}, 0x10000, v{vRV+k}' for k in range(8)]; vvar[0] = sl >> 2
        L += [f'ds_read_b64_tr_b16 {ar(vf(n>>1,j,e)+2*(n&1),2)}, v{vRV+2*j+e} offset:{(sl&3)*K16}' for j in range(4) for e in range(2)]
        return L
    def vsync(n):
        A.wait(vm=tokV[n], lg=A.lg_issued-1); barrier()
    def qk(i):
        return [f'v_mfma_f32_16x16x32_bf16 {vr(S(i,tt))}, {ar(kf(i,s))}, {vr(qf(tt,s))}, {"0" if s == 0 else vr(S(i,tt))}' for s in range(4) for tt in range(3)]
    vM = 112
    def mx(i):
        L = []
        for tt in range(3):
            s = S(i, tt)
            if i == 0: L += [f'v_max3_f32 v{vM+tt}, v{s}, v{s+1}, v{s+2}', f'v_max_f32 v{vM+tt}, v{vM+tt}, v{s+3}']
            else: L += [f'v_max3_f32 v{vM+tt}, v{vM+tt}, v{s}, v{s+1}', f'v_max3_f32 v{vM+tt}, v{vM+tt}, v{s+2}, v{s+3}']
        return [L[0], L[2], L[4], L[1], L[3], L[5]]
    emit(qk(0))
    emit(spread(qk(1), dmaV(3)))
    emit(spread(qk(2), mx(0)))
    vsync(1)
    emit(spread(qk(3), readV(0) + mx(1)))
    emit(spread(qk(4), readV(1) + dmaV(4)))
    emit(spread(qk(5), mx(2) + mx(3) + dmaV(5)))
    vsync(3)
    emit(spread(qk(6), readV(2) + mx(4)))
    emit(spread(qk(7), readV(3) + mx(5)))
    emit(dmaV(6)); emit(mx(6)); emit(dmaV(7)); emit(mx(7))
    stamp('QK done')
    A(f'''s_lshl_b32 s{sC}, s{sW}, 2
    v_lshlrev_b32 v8, 4, v{vL15}
    v_add_u32 v9, s{sC}, v8
    v_mul_u32_u24 v12, 12288, v{vQD}
    v_add_u32 v12, {PBUF}, v12
    v_add_u32 v{vST}, v12, v9
    s_mul_i32 s{sC}, s{sW}, 12288
    s_add_u32 s{sC}, s{sC}, {PBUF}
    v_add_u32 v{vST+1}, s{sC}, v8
    v_add_u32 v{vST+2}, s{sC}, v2
    v_lshl_add_u32 v13, v{vQD}, 12, v9
    v_add_u32 v13, {LSTAT}, v13
    s_add_u32 s{sC}, s{sW4k}, {LSTAT}
    v_add_u32 v14, s{sC}, v8''')
    vLW, vLR, vPW = 13, 14, vST+2
    for tt in range(3): A(f'v_mov_b32 v{116+tt}, v{vM+tt}')
    for tt in range(3): A(f'v_permlane16_swap_b32 v{vM+tt}, v{116+tt}')
    for tt in range(3): A(f'v_max_f32 v{vM+tt}, v{vM+tt}, v{116+tt}')
    for tt in range(3): A(f'v_mov_b32 v{116+tt}, v{vM+tt}')
    for tt in range(3): A(f'v_permlane32_swap_b32 v{vM+tt}, v{116+tt}')
    for tt in range(3): A(f'v_max_f32 v{vM+tt}, v{vM+tt}, v{116+tt}')
    for tt in range(3): A(f'ds_write_b32 v{vST}, v{vM+tt} offset:{tt*256}')
    vsync(5)
    for tt in range(3): A(f'ds_read_b128 {vr(116+4*tt)}, v{vST+1} offset:{tt*256}')
    emit(readV(4)); emit(dmaW(0)); emit(readV(5))
    cs = struct.unpack('<I', struct.pack('<f', math.log2(math.e)/math.sqrt(128)))[0]
    A(f's_mov_b32 s{sSc}, {cs:#x}')
    ones = 100
    for k in range(4): A(f'v_mov_b32 v{ones+k}, 0x3f803f80')
    for tt in range(3):
        A(f'v_max3_f32 v{vM+tt}, v{116+4*tt}, v{117+4*tt}, v{118+4*tt}\nv_max_f32 v{vM+tt}, v{vM+tt}, v{119+4*tt}')
    for tt in range(3): A(f'v_mul_f32 v{vM+tt}, s{sSc}, v{vM+tt}')
    stamp('max done')
    pf = lambda m, tt: 16 + (m*3+tt)*4
    oacc = lambda e, tt: 64 + (e*3+tt)*4
    lacc = lambda tt: 88 + 4*tt
    def expo(m, tt):
        regs = [S(2*m+u, tt)+r for u in range(2) for r in range(4)]
        L = [f'v_fma_f32 v{x}, v{x}, s{sSc}, -v{vM+tt}' for x in regs]
        L += [f'v_exp_f32 v{x}, v{x}' for x in regs]
        L += [f'v_cvt_pk_bf16_f32 v{pf(m,tt)+k}, v{regs[2*k]}, v{regs[2*k+1]}' for k in range(4)]
        L += [f'ds_write_b128 v{vPW}, {vr(pf(m,tt))} offset:{(m*3+tt)*1024}']
        return L
    def pvown(m, tt):
        L = [f'v_mfma_f32_16x16x32_bf16 {vr(oacc(e,tt))}, {ar(vf(m,0,e))}, {vr(pf(m,tt))}, {"0" if m == 0 else vr(oacc(e,tt))}' for e in range(2)]
        L += [f'v_mfma_f32_16x16x32_bf16 {vr(lacc(tt))}, {vr(ones)}, {vr(pf(m,tt))}, {"0" if m == 0 else vr(lacc(tt))}']
        return L
    seq = [(m, tt) for m in range(4) for tt in range(3)]
    extra = {1: dmaW(1), 3: dmaW(2), 6: readV(6), 7: readV(7), 8: dmaW(3)}
    for n, (m, tt) in enumerate(seq):
        if n == 6: vsync(7)
        fill = []
        if n > 0: fill += pvown(*seq[n-1])
        fill += extra.get(n, [])
        e = expo(m, tt)
        emit(e[:2] + spread(e[2:], fill))
    emit(pvown(*seq[-1]))
    for tt in range(3): A(f'ds_write_b32 v{vLW}, v{lacc(tt)} offset:{tt*256}')
    vPR = 8
    prr = {1: 8, 2: 9, 3: 12}
    for j in (1, 2, 3):
        A(f's_xor_b32 s{sC}, s{sW}, {j}\ns_mul_i32 s{sC}, s{sC}, 12288\ns_add_u32 s{sC}, s{sC}, {PBUF}\nv_add_u32 v{prr[j]}, s{sC}, v2')
    A.wait_lds(); barrier()
    stamp('exp done')
    pb = lambda k, tt: 128 + ((k % 8)*3+tt)*4
    ks = [(j, m) for j in (1, 2, 3) for m in range(4)]
    rdP = lambda k: [f'ds_read_b128 {vr(pb(k,tt))}, v{prr[ks[k][0]]} offset:{(ks[k][1]*3+tt)*1024}' for tt in range(3)]
    pv = lambda k: [f'v_mfma_f32_16x16x32_bf16 {vr(oacc(e,tt))}, {ar(vf(ks[k][1],ks[k][0],e))}, {vr(pb(k,tt))}, {vr(oacc(e,tt))}' for tt in range(3) for e in range(2)]
    emit(rdP(0) + rdP(1))
    ltok = [None]
    for tt in range(3): ltok[0] = A(f'ds_read_b128 {vr(116+4*tt)}, v{vLR} offset:{tt*256}')
    lsum = []
    for tt in range(3):
        lsum += [f'v_add_f32 v{116+4*tt}, v{116+4*tt}, v{117+4*tt}', f'v_add_f32 v{118+4*tt}, v{118+4*tt}, v{119+4*tt}', f'v_add_f32 v{116+4*tt}, v{116+4*tt}, v{118+4*tt}', f'v_rcp_f32 v{vM+tt}, v{116+4*tt}']
    extra = {1: dmaW(5), 3: lsum, 4: dmaW(6), 7: dmaW(4)}
    for k in range(12):
        fill = (rdP(k+2) if k+2 < 12 else []) + extra.get(k, [])
        emit(spread(pv(k), fill))
    barrier()
    A(f'''s_lshl_b32 s{sT0}, s{sB}, 5
    s_add_u32 s{sT0}, s{sT0}, s{sH}
    s_lshl_b32 s{sT1}, s{sT0}, 7
    s_mul_i32 s{sT0}, s{sT0}, 12288
    s_add_u32 s{sT0}, s{sT0}, s{sW3k}
    s_add_u32 s{sT0}, s{sT0}, {WS_OX}
    s_lshl_b32 s{sC}, s{sW}, 2
    s_add_u32 s{sT1}, s{sT1}, s{sC}
    s_add_u32 s{sT1}, s{sT1}, {WS_FL}
    v_mov_b32 v8, s{sN}
    v_mov_b32 v9, 0''')
    for tt in range(3):
        for e in range(2):
            for r in range(4): A(f'v_mul_f32 v{oacc(e,tt)+r}, v{oacc(e,tt)+r}, v{vM+tt}')
        for e in range(2):
            for k in range(2): A(f'v_cvt_pk_bf16_f32 v{116+4*tt+2*e+k}, v{oacc(e,tt)+2*k}, v{oacc(e,tt)+2*k+1}')
        A(f'buffer_store_dwordx4 {vr(116+4*tt)}, v2, {srd(sWS)}, s{sT0} offen offset:{tt*1024} sc1')
    stamp('O stored')
    vRO = 239
    A(f'''v_lshrrev_b32 v12, 1, v{vR}
    v_lshl_add_u32 v12, v{vQD}, 1, v12
    s_and_b32 s{sC}, s{sW}, 1
    s_lshl_b32 s{sO1}, s{sC}, 1
    v_xor_b32 v12, s{sO1}, v12
    v_and_b32 v12, 3, v12
    v_lshl_add_u32 v12, v12, 5, v{vC8}
    v_lshl_add_u32 v13, v{vQD}, 2, v{vR}
    v_lshl_add_u32 v12, v13, 7, v12
    s_lshl_b32 s{sO1}, s{sC}, 16
    v_add_u32 v{vRO}, s{sO1}, v12''')
    for e in range(1, 4): A(f'v_xor_b32 v{vRO+e}, {32*e}, v{vRO}')
    A(f'''s_lshl_b32 s{sC}, s{sC}, 2
    s_add_u32 s{sRotW+0}, s{sRotW}, 0
    s_add_u32 s{sRot1}, s{sRotW}, s{sC}
    v_add_u32 v12, s{sRot1}, v{vR}
    v_and_b32 v12, 7, v12
    v_lshrrev_b32 v13, 1, v{vC8}
    v_lshl_add_u32 v12, v12, 7, v13
    s_lshr_b32 s{sC}, s{sW}, 1
    s_lshl_b32 s{sO1}, s{sP}, 1
    s_add_u32 s{sC}, s{sC}, s{sO1}
    s_lshl_b32 s{sC}, s{sC}, 2
    s_add_u32 s{sC}, s{sC}, s{sG}
    s_mul_i32 s{sT0}, s{sC}, {8*12288}
    s_add_u32 s{sT0}, s{sT0}, {WS_OX}
    s_lshl_b32 s{sO2}, s{sC}, 10
    s_add_u32 s{sO2}, s{sO2}, {WS_FL}''')
    A.wait_vm0()
    A(f'buffer_store_dword v8, v9, {srd(sWS)}, s{sT1} offen sc1')
    emit(dmaW(7))
    A(f's_mov_b32 s{sCnt}, {SPIN_MAX}')
    A.label('L_poll')
    A(f'buffer_load_dword v13, v12, {srd(sWS)}, s{sO2} offen sc1')
    A(f's_sub_u32 s{sCnt}, s{sCnt}, 1\ns_cbranch_scc1 L_poll_ok')
    A(f'v_cmp_ne_u32 vcc, s{sN}, v13')
    A('s_cbranch_vccnz L_poll')
    A.label('L_poll_ok')
    A.raw('    s_waitcnt vmcnt(0)')
    stamp('O flags ok')
    of = lambda k, tt: (k*3+tt)*4
    def ldO(k):
        j, wp = k >> 2, k & 3
        L = []
        if wp == 0:
            L += [f's_add_u32 s{sC}, s{sRot1}, {j}', f's_and_b32 s{sC}, s{sC}, 7', f's_mul_i32 s{sC}, s{sC}, 12288', f's_add_u32 s{sO1}, s{sC}, s{sT0}']
        else:
            L += [f's_add_u32 s{sO1}, s{sO1}, 3072']
        L += [f'buffer_load_dwordx4 {ar(of(k,tt))}, v2, {srd(sWS)}, s{sO1} offen offset:{tt*1024} sc1' for tt in range(3)]
        return L
    acc = lambda e, tt: 16 + (e*3+tt)*4
    wf = lambda k, e: 64 + ((k & 3)*4 + e)*4
    rdW = lambda k: [f'ds_read_b64_tr_b16 {vr(wf(k,e)+2*u,2)}, v{vRO+e} offset:{k*4096+u*2048}' for e in range(4) for u in range(2)]
    p3 = lambda k: [f'v_mfma_f32_16x16x32_bf16 {vr(acc(e,tt))}, {vr(wf(k,e))}, {ar(of(k,tt))}, {"0" if k == 0 else vr(acc(e,tt))}' for tt in range(3) for e in (2, 3, 0, 1)]
    PRE = 4
    for k in range(PRE): emit(ldO(k))
    barrier()
    emit(rdW(0))
    for k in range(8): A(f'v_mov_b32 v{SB+4*k+3}, s{sN}')
    for k in range(16):
        fill = (rdW(k+1) if k+1 < 16 else []) + (ldO(k+PRE) if k+PRE < 16 else [])
        emit(spread(p3(k), fill))
    stamp('P3 done')
    A(f'''s_mul_i32 s{sC}, s{sW}, 6144
    s_add_u32 s{sC}, s{sC}, {RBUF}
    v_add_u32 v8, s{sC}, v2
    s_xor_b32 s{sC}, s{sW}, 1
    s_mul_i32 s{sC}, s{sC}, 6144
    s_add_u32 s{sC}, s{sC}, {RBUF}
    v_add_u32 v9, s{sC}, v2''')
    for k in range(6): A(f'ds_write_b128 v8, {vr(acc(2,0)+4*k)} offset:{k*1024}')
    A(f'''s_lshl_b32 s{sT0}, s{sB}, 3
    s_add_u32 s{sT0}, s{sT0}, s{sHH}
    s_lshl_b32 s{sT0}, s{sT0}, 2
    s_add_u32 s{sT0}, s{sT0}, s{sW}
    s_lshl_b32 s{sT0}, s{sT0}, 2
    s_add_u32 s{sT0}, s{sT0}, s{sG}
    s_lshl_b32 s{sT0}, s{sT0}, 13
    s_add_u32 s{sT0}, s{sT0}, {WS_FX}
    s_add_u32 s{sT1}, s{sT0}, 4096''')
    A.wait_lds(); barrier()
    for k in range(6): A(f'ds_read_b128 {vr(RB+4*k)}, v9 offset:{k*1024}')
    for f in range(24): A(f'v_add_f32 v{sbd(SB,f)}, v{acc(0,0)+f}, v{RB+f}')
    A(f's_cmp_eq_u32 s{sW}, s{sG}')
    A('s_cbranch_scc1 L_recv')
    for k in range(8):
        A(f'buffer_store_dwordx4 {vr(SB+4*k)}, v2, {srd(sWS)}, s{sT0 if k < 4 else sT1} offen offset:{(k&3)*1024} sc1')
    A('s_branch L_fin')
    A.label('L_recv')
    rbase = [16, 64, 96]
    sA = [(sO1, sO2), (sRot1, sRotW), (sW3k, sW4k)]
    for j in range(3):
        A(f's_xor_b32 s{sA[j][0]}, s{sT0}, {(j+1) << 13}\ns_add_u32 s{sA[j][1]}, s{sA[j][0]}, 4096')
    floads = [f'buffer_load_dwordx4 {vr(rbase[j]+4*k)}, v2, {srd(sWS)}, s{sA[j][k>>2]} offen offset:{(k&3)*1024} sc1' for j in range(3) for k in range(8)]
    fb = [rbase[j]+4*k for j in range(3) for k in range(8)]
    A(f'''s_lshr_b32 s{sC}, s{sW}, 1
    s_lshl_b32 s{sT1}, s{sP}, 1
    s_add_u32 s{sC}, s{sC}, s{sT1}
    s_mul_i32 s{sC}, s{sC}, {48*2048}
    s_lshl_b32 s{sT1}, s{sKH}, 3
    s_add_u32 s{sT1}, s{sT1}, s{sHH}
    s_lshl_b32 s{sT1}, s{sT1}, 1
    s_and_b32 s{sSc}, s{sW}, 1
    s_add_u32 s{sT1}, s{sT1}, s{sSc}
    s_lshl_b32 s{sT1}, s{sT1}, 6
    s_add_u32 s{sC}, s{sC}, s{sT1}
    v_lshlrev_b32 v12, 3, v{vQD}
    v_lshl_add_u32 v12, v{vL15}, 11, v12
    v_add_u32 v12, s{sC}, v12
    v_add_u32 v13, {16*2048}, v12
    v_add_u32 v14, {32*2048}, v12
    s_mov_b32 s{sCnt}, {SPIN_MAX}''')
    A.label('L_f_loop')
    A(f's_sub_u32 s{sCnt}, s{sCnt}, 1\ns_cbranch_scc1 L_f_ok')
    emit(floads)
    A.wait_vm0()
    emit(tagcheck(fb, 'L_f_loop'))
    A.label('L_f_ok')
    stamp('final recv')
    for j in range(3):
        for f in range(24): A(f'v_add_f32 v{sbd(SB,f)}, v{sbd(SB,f)}, v{sbd(rbase[j],f)}')
    for e in range(2):
        for tt in range(3):
            f = (e*3+tt)*4; d = RB + 2*(e*3+tt)
            A(f'v_cvt_pk_bf16_f32 v{d}, v{sbd(SB,f)}, v{sbd(SB,f+1)}\nv_cvt_pk_bf16_f32 v{d+1}, v{sbd(SB,f+2)}, v{sbd(SB,f+3)}')
            A(f'buffer_store_dwordx2 {vr(d,2)}, v{12+tt}, {srd(sOUT)}, 0 offen offset:{e*32}')
    A(f's_and_b32 s{sC}, s2, 63\ns_cmp_lg_u32 s{sC}, 0\ns_cbranch_scc1 L_fin')
    A(f's_lshl_b32 s{sC}, s{sP}, 7\nv_mov_b32 v8, s{sN}\nv_mov_b32 v9, 0')
    A(f'buffer_store_dword v8, v9, {srd(sWS)}, s{sC} offen sc1')
    A.label('L_fin')
    if stamps:
        A.raw('    s_waitcnt vmcnt(0)')
        A(f's_memtime s[{sM0}:{sM0+1}]\ns_memrealtime s[{sM1}:{sM1+1}]')
        A.raw('    s_waitcnt lgkmcnt(0)')
        A('v_mov_b32 v8, 0')
        vals = ['s100', f's{sM1}'] + [f's{sST+2*k}' for k in range(nst[0])] + [f's{sM0}']
        for k, s in enumerate(vals): A(f'v_writelane_b32 v8, {s}, {k}')
        A(f's_lshl_b32 s{sC}, s2, 10\ns_add_u32 s{sC}, s{sC}, {WS_ST}\nv_lshlrev_b32 v9, 2, v0')
        A(f'buffer_store_dword v8, v9, {srd(sWS)}, s{sC} offen')
    A.label('L_end')
    A('s_endpgm')
    for s in slow: A.raw(s)
    A.raw(f'''.section .rodata,"a"
.p2align 6
.amdhsa_kernel {NAME}_kernel
  .amdhsa_next_free_vgpr 512
  .amdhsa_next_free_sgpr 102
  .amdhsa_accum_offset 256
  .amdhsa_group_segment_fixed_size 0
  .amdhsa_kernarg_size 64
  .amdhsa_user_sgpr_count 2
  .amdhsa_user_sgpr_kernarg_segment_ptr 1
  .amdhsa_system_sgpr_workgroup_id_x 1
.end_amdhsa_kernel''')
    return A.text(), stn + ['end'], A.nops

if __name__ == '__main__':
    t, stn, nops = gen(stamps=False)
    open('cdna_kernels/%s.s' % NAME, 'w').write(t)
    t2, stn, _ = gen(stamps=True)
    open('k_stamp.s', 'w').write(t2)
    open('k_stamp.names', 'w').write('\n'.join(stn))
    print('lines', t.count('\n'), 'nops', nops, stn)
```

```python
import re

REG_RE = re.compile(r'^(-?)([vas])(\d+)$|^(-?)([vas])\[(\d+):(\d+)\]$')

def regs_of(op):
    op = op.strip()
    if op.startswith('abs(') or op.startswith('-abs('):
        op = op[op.index('(')+1:-1]
    m = REG_RE.match(op)
    if m:
        if m.group(2):
            return [(m.group(2), int(m.group(3)))]
        return [(m.group(5), i) for i in range(int(m.group(6)), int(m.group(7))+1)]
    if op == 'vcc': return [('s', 'vcc')]
    if op == 'exec': return [('s', 'exec')]
    if op == 'm0': return [('s', 'm0')]
    return []

TRANS = ('v_exp_f32', 'v_log_f32', 'v_rcp_f32', 'v_rsq_f32', 'v_sqrt_f32')

class Ins:
    def __init__(self, text):
        self.text = text
        t = text.split(';')[0].strip()
        parts = t.split(None, 1)
        self.op = parts[0]
        rest = parts[1] if len(parts) > 1 else ''
        ops = [o.strip() for o in rest.split(',')] if rest else []
        self.mods = []
        if ops:
            last = ops[-1].split()
            ops[-1] = last[0]
            self.mods = last[1:]
        self.ops = ops
        op = self.op
        self.cls = 'other'
        self.reads, self.writes = [], []
        self.srcc = []
        self.ab = []
        self.stdata = []
        if op.startswith('v_mfma'):
            self.cls = 'mfma'
            self.writes = regs_of(ops[0])
            self.ab = regs_of(ops[1]) + regs_of(ops[2])
            self.srcc = regs_of(ops[3])
            self.reads = self.ab + self.srcc
        elif op.startswith('ds_read'):
            self.cls = 'ds'
            self.writes = regs_of(ops[0]); self.reads = regs_of(ops[1])
        elif op.startswith('ds_write'):
            self.cls = 'ds'
            self.reads = sum((regs_of(o) for o in ops), [])
        elif op.startswith('buffer_load'):
            self.cls = 'vmem'
            if 'lds' in self.mods:
                self.reads = sum((regs_of(o) for o in ops), []) + [('s', 'm0')]
                self.dma = True
            else:
                self.writes = regs_of(ops[0]); self.reads = sum((regs_of(o) for o in ops[1:]), [])
        elif op.startswith('global_load'):
            self.cls = 'vmem'
            self.writes = regs_of(ops[0]); self.reads = sum((regs_of(o) for o in ops[1:]), [])
        elif op.startswith('buffer_store'):
            self.cls = 'vmem'
            self.reads = sum((regs_of(o) for o in ops), [])
            if op.endswith('x4') or op.endswith('x3'): self.stdata = regs_of(ops[0])
        elif op.startswith('s_load') or op in ('s_memtime', 's_memrealtime'):
            self.cls = 'smem'
            self.writes = regs_of(ops[0]); self.reads = sum((regs_of(o) for o in ops[1:]), [])
        elif op.startswith('v_permlane'):
            self.cls = 'valu'
            self.writes = regs_of(ops[0]) + regs_of(ops[1]); self.reads = list(self.writes)
        elif op.startswith('v_cmp'):
            self.cls = 'valu'
            self.writes = regs_of(ops[0]); self.reads = sum((regs_of(o) for o in ops[1:]), [])
        elif op.startswith('v_add_co') or op.startswith('v_addc_co'):
            self.cls = 'valu'
            self.writes = regs_of(ops[0]) + regs_of(ops[1]); self.reads = sum((regs_of(o) for o in ops[2:]), [])
        elif op.startswith('v_'):
            self.cls = 'valu'
            if ops:
                self.writes = regs_of(ops[0]); self.reads = sum((regs_of(o) for o in ops[1:]), [])
                if op.startswith('v_fmac') or op.startswith('v_writelane'): self.reads += self.writes
        elif op.startswith('s_cmp') or op.startswith('s_cbranch') or op in ('s_branch', 's_barrier', 's_waitcnt', 's_nop', 's_endpgm', 's_sleep', 's_setprio'):
            self.cls = 'salu'
            if op.startswith('s_cmp'): self.reads = sum((regs_of(o) for o in ops), [])
        elif op.startswith('s_'):
            self.cls = 'salu'
            self.writes = regs_of(ops[0]); self.reads = sum((regs_of(o) for o in ops[1:]), [])
            if op.endswith('saveexec_b64'): self.writes += [('s', 'exec')]
        else:
            raise ValueError('unknown op ' + text)
        self.states = 1
        if op == 's_nop': self.states = int(ops[0]) + 1

def need_states(prev, cur):
    n = 0
    pw, cr, cw = set(prev.writes), set(cur.reads), set(cur.writes)
    if prev.cls == 'valu':
        vw = {r for r in pw if r[0] in 'va'}
        sw = {r for r in pw if r[0] == 's'}
        if cur.cls == 'mfma' and vw & cr: n = max(n, 2)
        if cur.op.startswith('v_permlane') and vw & cr: n = max(n, 2)
        if cur.op.startswith('v_readfirstlane') or cur.op.startswith('v_readlane'):
            if vw & cr: n = max(n, 1)
            if sw & cr: n = max(n, 4)
        if prev.op in TRANS and cur.cls != 'salu' and vw & cr: n = max(n, 1)
        if cur.cls == 'vmem' and sw & cr: n = max(n, 5)
        if cur.cls == 'valu' and sw & cr: n = max(n, 2)
        if cur.cls in ('salu', 'smem') and sw & cr: n = max(n, 2)
        if ('s', 'exec') in sw and cur.cls == 'mfma': n = max(n, 4)
        if 'dpp' in cur.text and vw & cr: n = max(n, 2)
    if prev.op.startswith('v_dot'):
        if cur.op != prev.op and pw & (cr | cw): n = max(n, 3)
        if cur.op == prev.op and pw & set(regs_of(cur.ops[1]) + regs_of(cur.ops[2])): n = max(n, 3)
    if prev.cls == 'mfma':
        passes = 8 if '32x32' in prev.op else 4
        big = {4: 8, 8: 12}[passes]
        if cur.cls == 'mfma':
            if pw & set(cur.ab): n = max(n, big)
            if pw & set(cur.srcc) and prev.writes != cur.srcc: n = max(n, big - 2)
            if pw & cw and not (pw & set(cur.srcc)): n = max(n, big)
        elif cur.cls in ('valu', 'vmem', 'ds'):
            if pw & (cr | cw): n = max(n, big)
            if set(prev.srcc) & cw: n = max(n, {4: 3, 8: 7}[passes])
    if prev.cls == 'salu' and ('s', 'm0') in pw and cur.cls == 'vmem' and ('s', 'm0') in cr: n = max(n, 1)
    if prev.stdata and set(prev.stdata) & cw: n = max(n, 2)
    return n

class Asm:
    def __init__(self):
        self.out = []
        self.hist = []
        self.vm_issued = 0; self.vm_done = 0
        self.lg_issued = 0; self.lg_done = 0
        self.pend = {}
        self.sm_pending = False
        self.nops = 0
    def raw(self, text):
        self.out.append(text)
    def comment(self, text):
        self.out.append('; ' + text)
    def label(self, name):
        self.out.append(name + ':')
    def _emit(self, ins):
        self.out.append('    ' + ins.text)
        self.hist.append(ins)
        if len(self.hist) > 24: self.hist.pop(0)
    def wait(self, vm=None, lg=None):
        parts = []
        if vm is not None and vm >= self.vm_done:
            n = min(self.vm_issued - 1 - vm, 63)
            parts.append(f'vmcnt({n})'); self.vm_done = self.vm_issued - n
        if lg is not None and lg >= self.lg_done:
            n = min(self.lg_issued - 1 - lg, 15)
            parts.append(f'lgkmcnt({n})'); self.lg_done = self.lg_issued - n
            if n == 0: self._sm_clear()
        if parts: self._emit(Ins('s_waitcnt ' + ' '.join(parts)))
    def _sm_clear(self):
        self.sm_pending = False
        for r in [r for r, p in self.pend.items() if p[0] == 'sm']: del self.pend[r]
    def wait_lg0(self):
        if self.lg_done < self.lg_issued or self.sm_pending:
            self._emit(Ins('s_waitcnt lgkmcnt(0)')); self.lg_done = self.lg_issued; self._sm_clear()
    def wait_lds(self):
        self.wait(lg=self.lg_issued - 1)
    def wait_vm0(self):
        self.wait(vm=self.vm_issued - 1)
    def __call__(self, text):
        last = None
        for line in text.strip().split('\n'):
            line = line.strip()
            if line: last = self.ins(line)
        return last
    def prewait(self, texts):
        vm = lg = None
        for text in texts:
            ins = Ins(text)
            for r in ins.reads + ins.writes:
                p = self.pend.get(r)
                if p:
                    if p[0] == 'vm' and p[1] >= self.vm_done: vm = p[1] if vm is None else max(vm, p[1])
                    if p[0] == 'lg' and p[1] >= self.lg_done: lg = p[1] if lg is None else max(lg, p[1])
        self.wait(vm=vm, lg=lg)
    def ins(self, text):
        ins = Ins(text)
        vm = lg = None; sm = False
        for r in ins.reads + ins.writes:
            p = self.pend.get(r)
            if p:
                if p[0] == 'vm' and p[1] >= self.vm_done: vm = p[1] if vm is None else max(vm, p[1])
                if p[0] == 'lg' and p[1] >= self.lg_done: lg = p[1] if lg is None else max(lg, p[1])
                if p[0] == 'sm': sm = True
        if sm:
            self.wait(vm=vm); self.wait_lg0()
        else:
            self.wait(vm=vm, lg=lg)
        dist = 0; need = 0
        for prev in reversed(self.hist):
            k = need_states(prev, ins) - dist
            need = max(need, k)
            dist += prev.states
            if dist >= 20: break
        while need > 0:
            k = min(need, 16)
            self._emit(Ins(f's_nop {k-1}')); need -= k; self.nops += 1
        self._emit(ins)
        tok = None
        if ins.cls == 'vmem':
            tok = self.vm_issued; self.vm_issued += 1
            assert self.vm_issued - self.vm_done <= 63, 'vmcnt overflow'
            for r in ins.writes: self.pend[r] = ('vm', tok)
        elif ins.cls == 'ds':
            tok = self.lg_issued; self.lg_issued += 1
            for r in ins.writes: self.pend[r] = ('lg', tok)
        elif ins.cls == 'smem':
            self.sm_pending = True
            for r in ins.writes: self.pend[r] = ('sm', 0)
        return tok
    def text(self):
        return '\n'.join(self.out) + '\n'

def interleave(main, fill, start=0, every=1, per=1):
    out = []; fi = 0
    for i, m in enumerate(main):
        out.append(m)
        if i >= start and (i - start) % every == 0:
            for _ in range(per):
                if fi < len(fill): out.append(fill[fi]); fi += 1
    out += fill[fi:]
    return out

def spread(main, fill):
    out = []; n, m = len(main), len(fill); fi = 0
    for i, x in enumerate(main):
        out.append(x)
        tgt = (i + 1) * m // n
        while fi < tgt: out.append(fill[fi]); fi += 1
    return out

def is_free(x):
    return callable(x) or x.startswith('s_')

def weave(M, L=(), V=(), l0=0, l1=None, v0=0, v1=None):
    n = len(M)
    l1 = n if l1 is None else l1; v1 = n if v1 is None else v1
    def shares(items, a, b, cost):
        out = [[] for _ in range(n)]
        tot = sum(cost(x) for x in items); acc = 0; pend = []
        for x in items:
            c = cost(x)
            if c == 0: pend.append(x); continue
            i = a + min(int((acc + 1e-9) * (b - a) / max(tot, 1)), b - a - 1)
            out[i] += pend + [x]; pend = []; acc += c
        if pend: out[b-1] += pend
        return out
    Ls = shares(list(L), l0, l1, lambda x: 0 if (isinstance(x, str) and x.startswith('s_')) or getattr(x, 'free', False) else 1)
    Vs = shares(list(V), v0, v1, lambda x: 0 if is_free(x) else (2 if x.split()[0] in TRANS else 1))
    out = []
    for i in range(n):
        out.append(M[i]); out += Ls[i]; out += Vs[i]
    return out
def free(f):
    f.free = True
    return f

class Gaps:
    def __init__(self, M, A=None, look=1):
        self.M = list(M); self.L = [[] for _ in M]; self.V = [[] for _ in M]; self.S = [[] for _ in M]
        self.A = A; self.look = look
    def put(self, kind, items, a, b):
        dst = {'L': self.L, 'V': self.V, 'S': self.S}[kind]
        def cost(x):
            if kind == 'S': return 1
            if getattr(x, 'free', False): return 0
            if isinstance(x, str) and x.startswith('s_'): return 0
            if isinstance(x, str) and x.split()[0] in TRANS: return 2
            return 1
        tot = sum(cost(x) for x in items); acc = 0; pend = []; i = a
        for x in items:
            c = cost(x)
            if c == 0: pend.append(x); continue
            i = a + min(acc * (b - a) // max(tot, 1), b - a - 1)
            dst[i] += pend + [x]; pend = []; acc += c
        if pend: dst[i] += pend
        return i
    def put_dma(self, units, a, b):
        n = sum(len(u[1]) for u in units); k = 0; prev = a - 1
        lead = 2 if b - a >= n + 2 else 0
        for sal, lds in units:
            gs = [a + lead + (k + j) * (b - a - lead) // n for j in range(len(lds))]; k += len(lds)
            g0 = gs[0]; room = list(range(max(prev + 1, g0 - len(sal)), g0))
            for j, x in enumerate(sal):
                jj = j - (len(sal) - len(room))
                if room: self.S[room[max(jj, 0)]].append(x)
                else: self.L[g0].append(x)
            for g, x in zip(gs, lds): self.L[g].append(x)
            prev = gs[-1]
    def out(self):
        o = []
        for i, (m, s_, l, v) in enumerate(zip(self.M, self.S, self.L, self.V)):
            o.append(m)
            if self.A is not None and i + 1 < len(self.M):
                o.append(lambda t=self.M[i+1:i+1+self.look]: self.A.prewait(t))
            o += s_ + l + v
        return o
```

```python
import sys, math, struct
sys.path.insert(0, 'gen')
from asmlib import *

NAME = 'standalone__gqa_block_cached__near_ridge'
HEADER = open('cdna_kernels/%s.s.ref' % NAME).read().split('; Override')[0]

WS_EPOCH = 0
WS_FL = 0x1000
WS_OX = 0x10000
WS_FX = 0x400000
WS_ST = 0x1400000
SPIN_MAX = 1 << 16

K16 = 16384
R1 = 8 * K16
PB = [R1, R1 + 12288]
QBUF = R1
MSTAT = R1 + 24576
LSTAT = R1 + 24576 + 1024
RBUF = R1

sX, sWQ, sK, sV, sWO, sWS, sOUT = 20, 24, 28, 32, 36, 40, 44
sG, sKH, sP, sHH, sW, sB, sH, sN = 48, 49, 50, 51, 52, 53, 54, 55
sW3k, sW4k, sRot1, sRotW, sC, sO1, sO2, sT0, sT1, sCnt = 56, 57, 58, 59, 60, 61, 62, 63, 64, 65
sSc = 66
sM0, sM1 = 68, 70
sST = 72
sXB, sXO, sQS, sTab, sLo, sHi = 4, 5, 6, 7, 8, 9
sOA, sFA = 10, 11
sHead = 12
sFin = 96

def srd(n): return f's[{n}:{n+3}]'
def vr(a, n=4): return f'v[{a}:{a+n-1}]'
def ar(a, n=4): return f'a[{a}:{a+n-1}]'
MF = 'v_mfma_f32_16x16x32_bf16'

DEF = dict(wiss=1, swap=1, pace=10, rdend=9, wrg=[10, 16, 22], eb=[0, 10, 16, 22], la=3, pre3=4, tail3=3, fwait=4, kla=3, prio=0,
           lsched={'max': ['V2', 'V3'], 's0': ['V4', 'V5', 'V6'], 's1': ['V7', 'W0', 'W1'], 's2': [], 's3': [], 'vend': ['W2', 'W3', 'W4', 'W5', 'W6', 'W7']})
def skewidx(n, j, S):
    order = [j] + list(range(j)); c = j
    while c + S < n:
        order += [c + S] + list(range(c + 1, c + S)); c += S
    return order + list(range(c + 1, n))

def gen(stamps=None, amp=None, ampwg=None, **opt):
    o = dict(DEF); o.update(opt)
    A = Asm()
    B = Asm()
    nst = [0]; stn = []
    def stamp(name):
        if amp and name == amp[0]: A('s_memrealtime s[72:73]')
        if amp and name == amp[1]: A('s_memrealtime s[74:75]')
        if stamps and (name in stamps or name == 'start'):
            assert nst[0] < 12, name
            A(f's_memtime s[{sST+2*nst[0]}:{sST+2*nst[0]+1}]'); nst[0] += 1; stn.append(name)
    def emit(items, P=A):
        for it in items:
            if callable(it): it()
            else: P(it)
    barsA, barsB = [], []
    def bar(name, lds=True):
        if lds: A.wait_lds()
        A('s_barrier'); barsA.append(name)
    def barB(name):
        B('s_barrier'); barsB.append(name)
    lines = lambda t: [x.strip() for x in t.strip().split('\n')]
    def srd23(P, n, size): P(f's_mov_b32 s{n+2}, {size}\ns_mov_b32 s{n+3}, 0x20000')

    A.raw(HEADER.rstrip())
    A.raw('; @launch grid=(256,1,1) block=(512,1,1) lds=163840')
    A.raw('.amdgcn_target "amdgcn-amd-amdhsa--gfx950"\n.text\n.globl %s_kernel\n.p2align 8\n.type %s_kernel,@function\n%s_kernel:' % (NAME, NAME, NAME))
    A(f's_load_dwordx2 s[{sX}:{sX+1}], s[0:1], 0')
    A(f's_load_dwordx2 s[{sWQ}:{sWQ+1}], s[0:1], 24')
    A(f's_load_dwordx2 s[{sWS}:{sWS+1}], s[0:1], 56')
    A('s_cmp_ge_u32 s2, 256')
    A('s_cbranch_scc1 L_end')
    if stamps: A('s_memrealtime s[100:101]')
    stamp('start')
    vQD, vL3, vL7, vL15 = 4, 5, 6, 7
    A(f'''v_lshrrev_b32 v3, 6, v0
    v_and_b32 v1, 63, v0
    v_readfirstlane_b32 s{sT0}, v3
    s_and_b32 s{sKH}, s2, 1
    s_bfe_u32 s{sG}, s2, 0x20001
    s_bfe_u32 s{sHH}, s2, 0x30003
    s_lshr_b32 s{sP}, s2, 6
    s_and_b32 s{sW}, s{sT0}, 3
    s_lshl_b32 s{sB}, s{sP}, 1
    s_add_u32 s{sB}, s{sB}, s{sKH}
    s_lshl_b32 s{sH}, s{sG}, 3
    s_add_u32 s{sH}, s{sH}, s{sHH}
    s_mul_i32 s{sW3k}, s{sW}, 3072
    s_lshl_b32 s{sW4k}, s{sW}, 12
    v_lshrrev_b32 v{vQD}, 4, v1
    v_and_b32 v{vL15}, 15, v1
    s_cmp_{"lt" if o.get("swap") else "ge"}_u32 s{sT0}, 4
    s_cbranch_scc0 L_compute''')
    UN = sum(([f'X{c}', f'Q{2*c}', f'Q{2*c+1}'] for c in range(8)), []) + [f'{t}{i}' for t in 'KVW' for i in range(8)]
    slot = {u: n % 8 for n, u in enumerate(UN)}

    B.pend = dict(A.pend); B.sm_pending = True; B.hist = list(A.hist)
    vDX, vDW, vDK, vDV, vDO = 16, 19, 23, 27, 29
    B(f'''s_add_u32 s{sRot1}, s{sP}, s{sHH}
    s_and_b32 s{sRot1}, s{sRot1}, 3
    s_lshl_b32 s{sTab}, s{sKH}, 2
    s_or_b32 s{sTab}, s{sTab}, s{sRot1}
    s_mul_i32 s{sT0}, s{sW}, 12
    s_mul_i32 s{sT1}, s{sB}, {48*2048}
    v_add_u32 v8, s{sT0}, v{vQD}
    v_lshl_add_u32 v9, v8, 11, s{sT1}''')
    for i in range(3):
        if i: B(f'v_add_u32 v8, 4, v8\nv_add_u32 v9, {4*2048-1024}, v9')
        B(f'v_xor_b32 v10, v8, v{vL15}\nv_and_b32 v10, 15, v10\nv_lshl_add_u32 v{vDX+i}, v10, 4, v9')
    B(f'''s_lshl_b32 s{sT0}, s{sW}, 17
    s_lshl_b32 s{sT1}, s{sH}, 8
    s_add_u32 s{sT0}, s{sT0}, s{sT1}
    v_lshlrev_b32 v12, 1, v{vQD}
    v_xor_b32 v13, v12, v{vL15}
    v_lshlrev_b32 v8, 4, v13
    v_lshl_add_u32 v8, v{vQD}, 13, v8
    v_add_u32 v{vDW}, s{sT0}, v8
    v_add_u32 v{vDW+1}, {4*8192-1024}, v{vDW}
    v_xor_b32 v9, 128, v{vDW}
    v_add_u32 v{vDW+2}, {8*8192-2048}, v9
    v_add_u32 v{vDW+3}, {12*8192-3072}, v9''')
    srd23(B, sX, 786432); srd23(B, sWQ, 8388608)
    tok = {}
    def BD(text):
        if o['pace']: B.wait(vm=B.vm_issued - o['pace'])
        return B(text)
    def dma(*us):
        for u in us:
            t, i = u[0], int(u[1:]); sl = slot[u]*K16
            if t == 'X':
                B(f's_bfe_u32 s{sC}, s{sTab}, {4*i | 3 << 16:#x}\ns_add_u32 m0, s{sW3k}, {sl}\ns_lshl_b32 s{sO1}, s{sC}, 8')
                for j in range(3): tok[u] = BD(f'buffer_load_dwordx4 v{vDX+j}, {srd(sX)}, s{sO1} offen offset:{j*1024} lds')
                continue
            if t == 'Q':
                B(f's_add_u32 m0, s{sW4k}, {sl}')
                B(f's_add_u32 s{sO1}, s{sO1}, {1<<19}' if i & 1 else f's_lshl_b32 s{sO1}, s{sC}, 20')
                s, regs = sWQ, [vDW+j for j in range(4)]
            else:
                rot, sh, s, regs = {'K': (sHH, 14, sK, [vDK+j for j in range(4)]), 'V': (sHH, 14, sV, [vDV+(j & 1) for j in range(4)]),
                                    'W': (sRotW, 18, sWO, [vDO+j for j in range(4)])}[t]
                B(f's_add_u32 s{sC}, s{rot}, {i}\ns_and_b32 s{sC}, s{sC}, 7\ns_add_u32 m0, s{sW4k}, {sl}\ns_lshl_b32 s{sO1}, s{sC}, {sh}')
            for j in range(4): tok[u] = BD(f'buffer_load_dwordx4 v{regs[j]}, {srd(s)}, s{sO1} offen offset:{j*1024} lds')
    dma('X0', 'Q0')
    B(f's_load_dwordx2 s[{sK}:{sK+1}], s[0:1], 8')
    B(f's_load_dwordx2 s[{sV}:{sV+1}], s[0:1], 16')
    B(f's_load_dwordx2 s[{sWO}:{sWO+1}], s[0:1], 32')
    srd23(B, sK, 4194304); srd23(B, sV, 4194304); srd23(B, sWO, 8388608)
    tabs = [sum(c << (4*n) for n, c in enumerate(skewidx(8, j, 4))) for j in range(4)]
    B(f's_mov_b32 s{sTab}, {tabs[0]:#x}')
    for j in (1, 2, 3): B(f's_cmp_eq_u32 s{sRot1}, {j}\ns_cselect_b32 s{sTab}, {tabs[j]:#x}, s{sTab}')
    B(f's_mul_i32 s{sT1}, s{sKH}, 0x44444444\ns_xor_b32 s{sTab}, s{sTab}, s{sT1}')
    B(f'''s_lshl_b32 s{sRotW}, s{sP}, 1
    s_add_u32 s{sRotW}, s{sRotW}, s{sHH}
    s_lshl_b32 s{sT0}, s{sB}, 2
    s_add_u32 s{sT0}, s{sT0}, s{sG}
    s_lshl_b32 s{sT0}, s{sT0}, 17
    s_add_u32 s{sT0}, s{sT0}, s{sW4k}
    v_lshlrev_b32 v9, 8, v{vQD}
    v_add_u32 v9, s{sT0}, v9
    v_xor_b32 v8, v{vL15}, v{vQD}
    v_lshl_add_u32 v{vDK}, v8, 4, v9
    v_xor_b32 v{vDK+1}, 64, v{vDK}
    v_xor_b32 v{vDK+2}, 128, v{vDK}
    v_xor_b32 v{vDK+3}, 192, v{vDK}
    v_lshl_add_u32 v{vDV}, v13, 4, v9
    v_xor_b32 v{vDV+1}, 128, v{vDV}
    s_lshl_b32 s{sT0}, s{sG}, 5
    s_add_u32 s{sT0}, s{sT0}, s{sW}
    s_lshl_b32 s{sT0}, s{sT0}, 16
    s_lshl_b32 s{sT1}, s{sKH}, 3
    s_add_u32 s{sT1}, s{sT1}, s{sHH}
    s_lshl_b32 s{sT1}, s{sT1}, 7
    s_add_u32 s{sT0}, s{sT0}, s{sT1}
    v_lshrrev_b32 v{vL3}, 3, v1
    v_and_b32 v{vL7}, 7, v1
    v_xor_b32 v9, v12, v{vL7}
    v_lshlrev_b32 v9, 4, v9
    v_lshl_add_u32 v9, v{vL3}, 11, v9
    v_add_u32 v{vDO}, s{sT0}, v9''')
    for j in range(1, 4): B(f'v_add_u32 v{vDO+j}, {j*(16384-1024)}, v{vDO}')
    LA = o['la']
    def qunit(n): return (([f'X{n>>1}'] if n % 2 == 0 else []) + [f'Q{n}']) if n < 16 else ([f'K{n-16}'] if n < 18 else [])
    for n in range(1, LA): dma(*qunit(n))
    for i in range(16):
        B.wait(vm=tok[f'Q{i}']); barB(f'Q{i}')
        dma(*qunit(i + LA))
    for n in range(16 + LA, 18): dma(*qunit(n))
    barB('q')
    KL = o['kla']
    kv = [f'K{i}' for i in range(8)] + ['V0', 'V1']
    for n in range(2, KL): dma(kv[n])
    for i in range(8):
        B.wait(vm=tok[f'K{i}']); barB(f'K{i}')
        if i + KL < len(kv): dma(kv[i + KL])
    ls = o['lsched']
    barB('max'); dma(*ls['max'])
    for m in range(4):
        B.wait(vm=tok[f'V{2*m+1}']); barB(f's{m}'); dma(*ls[f's{m}'])
    barB('vend'); dma(*ls['vend'])
    if o['wiss']: barB('wiss')
    B.wait_vm0(); barB('W')
    B('s_endpgm')
    A.raw(B.text())

    A.label('L_compute')
    if o['prio']: A(f's_setprio {o["prio"]}')
    A('s_getpc_b64 s[10:11]')
    A.label('L_pc')
    A(f's_sub_u32 s10, s10, L_pc-{NAME}_kernel\ns_subb_u32 s11, s11, 0')
    A(f'v_and_b32 v8, 255, v0\nv_lshlrev_b32 v8, 7, v8\nv_min_u32 v8, L_last-{NAME}_kernel, v8\nv_mov_b32 v9, s11')
    A('v_add_co_u32 v8, vcc, s10, v8\nv_lshlrev_b32 v2, 4, v1\nv_bfe_u32 v10, v1, 2, 2\nv_addc_co_u32 v9, vcc, 0, v9, vcc')
    A('global_load_dword v15, v[8:9], off')
    A(f's_load_dwordx2 s[{sOUT}:{sOUT+1}], s[0:1], 40')
    A(f's_lshl_b32 s{sT0}, s{sP}, 7')
    A(f's_load_dword s{sN}, s[{sWS}:{sWS+1}], s{sT0}')
    srd23(A, sWS, 0x10000000); srd23(A, sOUT, 786432)
    vR, vC8, vPoll = 10, 11, 3
    vRK, vT = 16, 16
    vM = lambda tt: 28 + 2*tt
    vRV, vSW, vSR, vPW = 34, 42, 43, 44
    prr = {1: 45, 2: 46, 3: 47}
    S = lambda i, tt: 48 + (i*3+tt)*4
    QA, vRW, vRX, vWQ, vRQ, vPK, vFF = 48, 72, 76, 84, 86, 92, 104
    ones = 84
    A(f'''v_and_b32 v{vC8}, 3, v1
    v_lshlrev_b32 v{vC8}, 3, v{vC8}
    v_and_b32 v8, 1, v{vQD}
    v_lshl_or_b32 v8, v8, 2, v{vR}
    s_lshl_b32 s{sT0}, s{sW}, 1
    v_xor_b32 v8, s{sT0}, v8
    v_lshl_add_u32 v8, v8, 5, v{vC8}
    v_lshl_add_u32 v9, v{vQD}, 3, v{vR}
    v_lshl_add_u32 v{vRW}, v9, 8, v8
    v_xor_b32 v{vRW+1}, 32, v{vRW}
    v_add_u32 v{vRW+2}, 0x10000, v{vRW}
    v_add_u32 v{vRW+3}, 0x10000, v{vRW+1}
    s_lshl_b32 s{sRotW}, s{sP}, 1
    s_add_u32 s{sRotW}, s{sRotW}, s{sHH}
    v_lshl_add_u32 v8, v{vQD}, 2, v{vR}
    v_and_b32 v12, 7, v8
    v_xor_b32 v12, s{sT0}, v12
    v_lshl_add_u32 v12, v12, 5, v{vC8}
    v_lshl_add_u32 v12, v8, 8, v12
    v_add_u32 v{vRV}, s{sW4k}, v12''')
    for j in range(4):
        for e in range(2):
            if j or e: A(f'v_xor_b32 v{vRV+2*j+e}, {j*4096+e*32}, v{vRV}')
    A(f'''v_xor_b32 v8, v{vL15}, v{vQD}
    v_lshlrev_b32 v8, 4, v8
    v_lshl_add_u32 v{vRX}, v{vL15}, 8, v8''')
    for s in range(1, 4): A(f'v_xor_b32 v{vRX+s}, {64*s}, v{vRX}')
    for s in range(4): A(f'v_add_u32 v{vRX+4+s}, 0x10000, v{vRX+s}\nv_add_u32 v{vRQ+s}, {QBUF}, v{vRX+s}')
    for s in range(8): A(f'v_add_u32 v{vRK+s}, s{sW4k}, v{vRX+s}')
    A(f'''v_lshrrev_b32 v8, 1, v{vQD}
    s_lshl_b32 s{sT0}, s{sW}, 2
    v_or_b32 v8, s{sT0}, v8
    v_xor_b32 v8, v8, v{vL15}
    v_lshlrev_b32 v8, 1, v8
    v_and_or_b32 v8, v{vQD}, 1, v8
    v_lshlrev_b32 v8, 3, v8
    v_lshl_add_u32 v8, v{vL15}, 8, v8
    v_add_u32 v{vWQ}, {QBUF}, v8
    v_xor_b32 v{vWQ+1}, 32, v{vWQ}
    v_lshlrev_b32 v8, 4, v{vL15}
    v_add_u32 v{vSR}, {MSTAT}, v8
    v_add_u32 v{vSW}, s{sT0}, v{vSR}
    s_add_u32 s{sT1}, s{sW3k}, {PB[0]}
    v_add_u32 v{vPW}, s{sT1}, v2''')
    for j in (1, 2, 3):
        A(f's_xor_b32 s{sT1}, s{sW}, {j}\ns_mul_i32 s{sT1}, s{sT1}, 3072\ns_add_u32 s{sT1}, s{sT1}, {PB[0]}\nv_add_u32 v{prr[j]}, s{sT1}, v2')
    A('v_mov_b32 v8, 0x3f803f80')
    for k in range(4): A(f'v_accvgpr_write_b32 a{ones+k}, v8\nv_mov_b32 v{vFF+k}, -1')
    cs = struct.unpack('<I', struct.pack('<f', math.log2(math.e)/math.sqrt(128)))[0]
    A(f'''s_mov_b32 s{sSc}, {cs:#x}
    s_mov_b32 s{sSc+1}, {cs:#x}
    s_mov_b32 s{sLo}, 0x3f80
    s_mov_b32 s{sHi}, 0x3f800000
    s_lshl_b32 s{sOA}, s{sB}, 5
    s_add_u32 s{sOA}, s{sOA}, s{sH}
    s_lshl_b32 s{sFA}, s{sOA}, 7
    s_mul_i32 s{sOA}, s{sOA}, 12288
    s_add_u32 s{sOA}, s{sOA}, s{sW3k}
    s_add_u32 s{sOA}, s{sOA}, {WS_OX}
    s_add_u32 s{sFA}, s{sFA}, s{sT0}
    s_add_u32 s{sFA}, s{sFA}, {WS_FL}''')
    A(f'''s_and_b32 s{sT1}, s{sW}, 1
    s_lshl_b32 s{sXB}, s{sT1}, 2
    s_add_u32 s{sRot1}, s{sRotW}, s{sXB}
    v_add_u32 v12, s{sRot1}, v{vR}
    v_and_b32 v12, 7, v12
    v_lshrrev_b32 v13, 1, v{vC8}
    v_lshl_add_u32 v{vPoll}, v12, 7, v13
    s_lshr_b32 s{sXB}, s{sW}, 1
    s_lshl_b32 s{sXO}, s{sP}, 1
    s_add_u32 s{sXB}, s{sXB}, s{sXO}
    s_lshl_b32 s{sXO}, s{sXB}, 2
    s_add_u32 s{sXO}, s{sXO}, s{sG}
    s_lshl_b32 s{sO2}, s{sXO}, 10
    s_add_u32 s{sO2}, s{sO2}, {WS_FL}
    s_mul_i32 s{sT0}, s{sXO}, {8*12288}
    s_add_u32 s{sT0}, s{sT0}, {WS_OX}
    s_mul_i32 s{sO1}, s{sT1}, 6144
    s_xor_b32 s{sTab}, s{sO1}, 6144''')
    for j in range(4):
        A(f'''s_add_u32 s{sC}, s{sRot1}, {j}
        s_and_b32 s{sC}, s{sC}, 7
        s_mul_i32 s{sC}, s{sC}, 12288
        s_add_u32 s{sC}, s{sC}, s{sT0}
        s_add_u32 s{sHead+2*j}, s{sC}, s{sO1}
        s_add_u32 s{sHead+2*j+1}, s{sC}, s{sTab}''')
    A(f'''s_mul_i32 s{sXB}, s{sXB}, {48*2048}
    s_lshl_b32 s{sXO}, s{sKH}, 3
    s_add_u32 s{sXO}, s{sXO}, s{sHH}
    s_lshl_b32 s{sXO}, s{sXO}, 1
    s_add_u32 s{sXO}, s{sXO}, s{sT1}
    s_lshl_b32 s{sXO}, s{sXO}, 6
    s_add_u32 s{sXB}, s{sXB}, s{sXO}
    s_lshl_b32 s{sQS}, s{sB}, 3
    s_add_u32 s{sQS}, s{sQS}, s{sHH}
    s_lshl_b32 s{sQS}, s{sQS}, 2
    s_add_u32 s{sQS}, s{sQS}, s{sW}
    s_lshl_b32 s{sQS}, s{sQS}, 2
    s_add_u32 s{sQS}, s{sQS}, s{sG}
    s_lshl_b32 s{sQS}, s{sQS}, 12
    s_add_u32 s{sQS}, s{sQS}, {WS_FX}
    s_xor_b32 s{sFin}, s{sQS}, {1 << 12}
    s_xor_b32 s{sFin+1}, s{sQS}, {2 << 12}
    s_xor_b32 s{sFin+2}, s{sQS}, {3 << 12}
    s_mov_b32 s{sCnt}, {SPIN_MAX}''')
    A(f's_mul_i32 s{sN}, s{sN}, 0x19660d\ns_add_u32 s{sN}, s{sN}, 0x3c6ef35f')
    A(f'v_mov_b32 v8, s{sN}\nv_mov_b32 v9, 0')
    stamp('prologue')

    qa = lambda u, tt: QA + (u*3+tt)*4
    aw = lambda z, u: (z*2+u)*4
    fx = lambda z, tt: 32 + 12*z + 4*tt
    def rdX(u, sx, z):
        sl = slot[u]
        return [f'ds_read_b128 {ar(fx(z,tt))}, v{vRX+4*(sl>>2)+sx} offset:{(sl&3)*K16+tt*4096}' for tt in range(3)]
    def rdQ(i, s, z):
        sl = slot[f'Q{i}']
        return [f'ds_read_b64_tr_b16 {ar(aw(z,u)+2*v,2)}, v{vRW+2*(sl>>2)+u} offset:{(sl&3)*K16+(32*s+4*v)*256}' for u in range(2) for v in range(2)]
    def mm(z, first, umajor=False):
        idx = [(u, tt) for u in range(2) for tt in range(3)] if umajor else [(u, tt) for tt in range(3) for u in range(2)]
        return [f'{MF} {vr(qa(u,tt))}, {ar(aw(z,u))}, {ar(fx(z,tt))}, {"0" if first else vr(qa(u,tt))}' for u, tt in idx]
    pl = f'buffer_load_dword v14, v{vPoll}, {srd(sWS)}, s{sO2} offen sc1'
    for i in range(16):
        bar(f'Q{i}')
        if i in (0, 2, 8, 15): stamp(f'Q{i} landed')
        y = f'X{i>>1}'; z = 2*(i & 1)
        r0 = rdQ(i, 0, z); x0 = rdX(y, z, z); r1 = rdQ(i, 1, z+1); x1 = rdX(y, z+1, z+1)
        ra = [r0[0], r0[1], x0[0], r0[2], r0[3], x0[1], x0[2]]; rb = [r1[0], r1[1], x1[0], r1[2], r1[3], x1[1], x1[2]]
        M = (mm((z ^ 2)+1, False) if 0 < i < 15 else []) + mm(z, i == 0)
        if i >= 14: M += mm(z+1, False, i == 15)
        G = Gaps(M, A)
        if i in (0, 15): emit(ra + rb)
        else:
            emit(ra[:3]); G.put('L', ra[3:] + rb, 0, 6)
        emit(G.out())
        if i == o.get('prestep', 4):
            for tt in range(3): ptok = A(f'buffer_store_dwordx4 {vr(vFF)}, v2, {srd(sWS)}, s{sOA} offen offset:{tt*1024} sc1')
        if i == o.get('flagstep', 11):
            A.wait(vm=ptok)
            A(f's_mov_b64 exec, 1\nbuffer_store_dword v8, v9, {srd(sWS)}, s{sFA} offen sc1\ns_mov_b64 exec, -1')
    sbd = lambda base, dd: base + 4*(dd//3) + dd % 3
    def tagcheck(bases, lbl, t0=8, t1=15):
        tags = [b+3 for b in bases]
        L = [f'v_min3_u32 v{t0}, v{tags[0]}, v{tags[1]}, v{tags[2]}', f'v_max3_u32 v{t1}, v{tags[0]}, v{tags[1]}, v{tags[2]}']
        rest = tags[3:]
        while len(rest) >= 2:
            L += [f'v_min3_u32 v{t0}, v{t0}, v{rest[0]}, v{rest[1]}', f'v_max3_u32 v{t1}, v{t1}, v{rest[0]}, v{rest[1]}']; rest = rest[2:]
        if rest: L += [f'v_min_u32 v{t0}, v{t0}, v{rest[0]}', f'v_max_u32 v{t1}, v{t1}, v{rest[0]}']
        L += [f'v_cmp_ne_u32 s[{sM0}:{sM0+1}], s{sN}, v{t0}', f'v_cmp_ne_u32 vcc, s{sN}, v{t1}', f's_or_b64 vcc, vcc, s[{sM0}:{sM0+1}]', f's_cbranch_scc1 {lbl}']
        return L
    slow = []
    def slowpath(name, loads, check):
        C = Asm()
        C.label(f'L_{name}_slow')
        C(f's_cmp_eq_u32 s{sCnt}, 0\ns_cbranch_scc1 L_{name}_ok\ns_sub_u32 s{sCnt}, s{sCnt}, 1')
        for x in loads: C(x)
        C.wait_vm0()
        for x in check: C(x)
        C(f's_branch L_{name}_ok')
        slow.append(C.text())
    unp = lambda dst, src: [f'v_dot2_f32_bf16 v{dst}, v{src}, s{sLo}, v{dst}', f'v_dot2_f32_bf16 v{dst+1}, v{src}, s{sHi}, v{dst+1}']
    for dd in range(12): A(f'v_cvt_pk_bf16_f32 v{vPK+dd}, v{QA+2*dd}, v{QA+1+2*dd}')
    for u in range(2):
        for tt in range(3): A(f'ds_write_b64 v{vWQ+u}, {vr(vPK+2*(u*3+tt),2)} offset:{tt*4096}')
    bar('q')
    qf = lambda tt, s: 32 + (tt*4+s)*4
    for s in range(4):
        for tt in range(3): A(f'ds_read_b128 {ar(qf(tt,s))}, v{vRQ+s} offset:{tt*4096}')
    stamp('q ready')
    kfb = lambda n, s: (n & 1)*16 + s*4
    readK = lambda n: [free(lambda: bar(f'K{n}', lds=False))] + [f'ds_read_b128 {ar(kfb(n,s))}, v{vRK+4*(n>>2)+s} offset:{(n&3)*K16}' for s in range(4)]
    emit(readK(0))
    stamp('K0 landed')
    def qk(i):
        return [f'{MF} {vr(S(i,tt))}, {ar(kfb(i,s))}, {ar(qf(tt,s))}, {"0" if s == 0 else vr(S(i,tt))}' for s in range(4) for tt in range(3)]
    def mx(i):
        L = []
        for tt in range(3):
            s = S(i, tt)
            if i == 0: L += [f'v_max3_f32 v{vM(tt)}, v{s}, v{s+1}, v{s+2}', f'v_max_f32 v{vM(tt)}, v{vM(tt)}, v{s+3}']
            else: L += [f'v_max3_f32 v{vM(tt)}, v{vM(tt)}, v{s}, v{s+1}', f'v_max3_f32 v{vM(tt)}, v{vM(tt)}, v{s+2}, v{s+3}']
        return [L[0], L[2], L[4], L[1], L[3], L[5]]
    q7 = qk(7); q7 = [q7[s*3+tt] for tt in range(3) for s in range(4)]
    G = Gaps(sum((qk(i) for i in range(7)), []) + q7, A)
    kr = o.get('kr', 6)
    for i in range(8):
        if i < 7: G.put('L', readK(i+1), 12*i+kr, 12*i+kr+3)
        if i > 0: G.put('V', mx(i-1), 12*i+5, 12*i+11)
    emit(G.out())
    m7 = mx(7); emit([m7[0], m7[3], m7[1], m7[4]])
    for tt in range(2): A(f'v_mov_b32 v{vT+tt}, v{vM(tt)}')
    emit([m7[2], m7[5]])
    stamp('QK done')
    A(f'v_mov_b32 v{vT+2}, v{vM(2)}')
    for tt in range(3): A(f'v_permlane16_swap_b32 v{vM(tt)}, v{vT+tt}')
    for tt in range(3): A(f'v_max_f32 v{vM(tt)}, v{vM(tt)}, v{vT+tt}')
    for tt in range(3): A(f'v_mov_b32 v{vT+tt}, v{vM(tt)}')
    for tt in range(3): A(f'v_permlane32_swap_b32 v{vM(tt)}, v{vT+tt}')
    for tt in range(3): A(f'v_max_f32 v{vM(tt)}, v{vM(tt)}, v{vT+tt}')
    for tt in range(3): A(f'ds_write_b32 v{vSW}, v{vM(tt)} offset:{tt*256}')
    A(pl)
    bar('max')
    for tt in range(3): A(f'ds_read_b128 {vr(vT+4*tt)}, v{vSR} offset:{tt*256}')
    for tt in range(3):
        A(f'v_max3_f32 v{vT+4*tt}, v{vT+4*tt}, v{vT+4*tt+1}, v{vT+4*tt+2}\nv_max_f32 v{vT+4*tt}, v{vT+4*tt}, v{vT+4*tt+3}')
        A(f'v_mul_f32 v{vM(tt)}, s{sSc}, -v{vT+4*tt}\nv_mul_f32 v{vM(tt)+1}, s{sSc}, -v{vT+4*tt}')
    stamp('max done')
    pf = lambda m, tt: S(2*m, tt)
    oacc = lambda e, tt: 144 + (e*3+tt)*4
    lacc = lambda tt: 68 + 4*tt
    sreg = lambda m, tt: [S(2*m+u, tt)+r for u in range(2) for r in range(4)]
    pk = lambda m, tt: [f'v_pk_fma_f32 {vr(x,2)}, {vr(x,2)}, s[{sSc}:{sSc+1}], {vr(vM(tt),2)}' for x in sreg(m, tt)[::2]]
    def expo(m, tt):
        regs = sreg(m, tt)
        return [f'v_exp_f32 v{x}, v{x}' for x in regs] + [f'v_cvt_pk_bf16_f32 v{pf(m,tt)+k}, v{regs[2*k]}, v{regs[2*k+1]}' for k in range(4)]
    wrP = lambda m, tt: f'ds_write_b128 v{vPW}, {vr(pf(m,tt))} offset:{(m&1)*12288+tt*1024}'
    av = lambda j, e: (j*2+e)*4
    ap = lambda j, tt: 32 + ((j-1)*3+tt)*4
    rdV = lambda m, j: [f'ds_read_b64_tr_b16 {ar(av(j,e)+2*u,2)}, v{vRV+2*j+e} offset:{((2*m+u)&3)*K16}' for e in range(2) for u in range(2)]
    rdP = lambda m, j: [f'ds_read_b128 {ar(ap(j,tt))}, v{prr[j]} offset:{(m&1)*12288+tt*1024}' for tt in range(3)]
    def pv(m, j):
        return [f'{MF} {vr(oacc(e,tt))}, {ar(av(j,e))}, {vr(pf(m,tt)) if j == 0 else ar(ap(j,tt))}, {"0" if m == 0 and j == 0 else vr(oacc(e,tt))}' for tt in range(3) for e in range(2)]
    lsumm = lambda m: [f'{MF} {ar(lacc(tt))}, {ar(ones)}, {vr(pf(m,tt))}, {"0" if m == 0 else ar(lacc(tt))}' for tt in range(3)]
    for tt in range(3): emit(pk(0, tt))
    pk3 = lambda m: sum((pk(m, tt) for tt in range(3)), [])
    emit(expo(0, 0) + [wrP(0, 0)] + expo(0, 1) + pk3(1)[:6] + [wrP(0, 1)] + expo(0, 2) + pk3(1)[6:] + [wrP(0, 2)] + pk3(2) + pk3(3))
    for m in range(4):
        stamp(f'pre s{m}')
        bar(f's{m}')
        stamp(f's{m}')
        emit(rdV(m, 0))
        M = (lsumm(m) if m < 3 else []) + pv(m, 0) + pv(m, 1) + pv(m, 2) + pv(m, 3)
        if m == 2: M = M[:24] + lsumm(3) + M[24:]
        rd = []
        for j in (1, 2, 3):
            v, p_ = rdV(m, j), rdP(m, j)
            rd += [v[0], v[1], p_[0], v[2], v[3], p_[1], p_[2]]
        if m == 3:
            emit(rd[:7] + [f'ds_read_b128 {vr(vT+4*tt)}, v{vSR} offset:{LSTAT-MSTAT+tt*256}' for tt in range(3)]); rd = rd[7:]
        G = Gaps(M, A)
        G.put('L', rd, 0, o.get('rdend', 18) if m < 3 else 14)
        if m < 3:
            bounds = o.get('eb', [0, 8, 16, 23])
            for tt in range(3):
                g = G.put('V', expo(m+1, tt), bounds[tt], bounds[tt+1])
                g = max(g+1, o['wrg'][tt])
                G.put('L', [wrP(m+1, tt)], g, g+1)
            if m == 1: G.put('V', [f'v_xor_b32 v{vRV+k}, 0x10000, v{vRV+k}' for k in range(8)], 23, 27)
        else:
            lsum = []
            for tt in range(3):
                t = vT+4*tt
                lsum += [f'v_add_f32 v{t}, v{t}, v{t+1}', f'v_add_f32 v{t+2}, v{t+2}, v{t+3}', f'v_add_f32 v{t}, v{t}, v{t+2}', f'v_rcp_f32 v{vM(tt)}, v{t}', f'v_rcp_f32 v{vM(tt)+1}, v{t}']
            G.put('V', lsum, 8, 22)
        emit(G.out())
        if m == 2: emit([f'ds_write_b32 v{vSW}, a{lacc(tt)} offset:{LSTAT-MSTAT+tt*256}' for tt in range(3)])
    vO = 132
    for tt in range(3):
        for e in range(2):
            for r in (0, 2): A(f'v_pk_mul_f32 {vr(oacc(e,tt)+r,2)}, {vr(oacc(e,tt)+r,2)}, {vr(vM(tt),2)}')
        for e in range(2):
            for k in range(2): A(f'v_cvt_pk_bf16_f32 v{vO+4*tt+2*e+k}, v{oacc(e,tt)+2*k}, v{oacc(e,tt)+2*k+1}')
        otok = A(f'buffer_store_dwordx4 {vr(vO+4*tt)}, v2, {srd(sWS)}, s{sOA} offen offset:{tt*1024} sc1')
    stamp('O stored')
    bar('vend')
    stamp('vend')
    vRO = 16
    vRdW, vRdR, vOut, v2b = 24, 25, 26, 29
    SB, RB = 32, 48
    A(f'''v_lshrrev_b32 v12, 1, v{vR}
    v_lshl_add_u32 v12, v{vQD}, 1, v12
    s_lshl_b32 s{sC}, s{sT1}, 1
    v_xor_b32 v12, s{sC}, v12
    v_and_b32 v12, 3, v12
    v_lshl_add_u32 v12, v12, 5, v{vC8}
    v_lshl_add_u32 v13, v{vQD}, 2, v{vR}
    v_lshl_add_u32 v12, v13, 7, v12
    s_mul_i32 s{sC}, s{sT1}, {65536+8192}
    v_add_u32 v{vRO}, s{sC}, v12
    s_mul_i32 s{sC}, s{sT1}, {65536-8192}
    v_add_u32 v{vRO+4}, s{sC}, v12''')
    for e in range(1, 4): A(f'v_xor_b32 v{vRO+e}, {32*e}, v{vRO}\nv_xor_b32 v{vRO+4+e}, {32*e}, v{vRO+4}')
    for k in range(4): A(f'v_mov_b32 v{SB+4*k+3}, s{sN}')
    A(f'''v_add_u32 v{v2b}, 3072, v2
    v_and_b32 v12, 1, v{vQD}
    v_lshrrev_b32 v13, 1, v{vQD}
    v_lshl_add_u32 v12, v12, 1, v13
    v_lshlrev_b32 v12, 4, v12
    v_lshl_add_u32 v12, v{vL15}, 11, v12
    v_add_u32 v{vOut}, s{sXB}, v12
    v_add_u32 v{vOut+1}, {16*2048}, v{vOut}
    v_add_u32 v{vOut+2}, {32*2048}, v{vOut}
    s_mul_i32 s{sC}, s{sW}, 6144
    s_add_u32 s{sC}, s{sC}, {RBUF}
    v_add_u32 v{vRdW}, s{sC}, v2
    s_xor_b32 s{sC}, s{sW}, 1
    s_mul_i32 s{sC}, s{sC}, 6144
    s_add_u32 s{sC}, s{sC}, {RBUF}
    v_add_u32 v{vRdR}, s{sC}, v2''')
    chk = [f'v_cmp_ne_u32 vcc, s{sN}, v14', 's_cbranch_vccnz L_poll_slow']
    emit(chk); A.label('L_poll_ok')
    slowpath('poll', [pl], chk)
    if o.get('owait') is not None: A.wait(vm=otok - o['owait'])
    accr = lambda e, tt: vr(144 + (e*3+tt)*4) if e < 2 else ar(64 + ((e-2)*3+tt)*4)
    wf = lambda k, e: ((k & 3)*4 + e)*4
    rdW = lambda k: [f'ds_read_b64_tr_b16 {ar(wf(k,e)+2*u,2)}, v{vRO+4*((k>>1)&1)+e} offset:{k*4096+u*2048}' for e in (2, 3, 0, 1) for u in range(2)]
    of = lambda k, tt: 48 + ((k & 7)*3+tt)*4
    ldO = lambda k: [f'buffer_load_dwordx4 {vr(of(k,tt))}, v{v2b if k & 1 else 2}, {srd(sWS)}, s{sHead+(k>>1)} offen offset:{tt*1024} sc1' for tt in range(3)]
    p3 = lambda k, es: [f'{MF} {accr(e,tt)}, {ar(wf(k,e))}, {vr(of(k,tt))}, {"0" if k == 0 else accr(e,tt)}' for tt in range(3) for e in es]
    def chkO(k):
        c = [f'v_max3_u32 v8, v{of(k,0)+3}, v{of(k,1)+3}, v{of(k,2)+3}', 'v_cmp_eq_u32 vcc, -1, v8', f's_cbranch_vccnz L_o{k}_slow']
        slowpath(f'o{k}', ldO(k), c)
        return c
    def brk(k, text):
        def f(): A(text); A.label(f'L_o{k}_ok')
        return f
    PRE, TL = o['pre3'], o['tail3']
    assert TL <= PRE <= 7
    if o['wiss']: bar('wiss')
    stamp('wiss')
    P0 = o.get('pre0', 2)
    for k in range(P0): emit(ldO(k))
    bar('W')
    stamp('W landed')
    emit(rdW(0))
    for k in range(P0, PRE): emit(ldO(k))
    c = chkO(0); emit(c[:2]); brk(0, c[2])()
    stamp('O first')
    M = sum((p3(k, (2, 3, 0, 1)) for k in range(16-TL)), []) + sum((p3(k, (2, 3)) for k in range(16-TL, 16)), []) + sum((p3(k, (0, 1)) for k in range(16-TL, 16)), [])
    G = Gaps(M, A)
    b0 = 12*(16-TL)
    for k in range(16-TL):
        for x, g in zip(rdW(k+1), [0, 1, 3, 4, 5, 7, 8, 9]): G.L[12*k+g].append(x)
        if k+PRE < 16:
            for x, g in zip(ldO(k+PRE), [2, 6, 10]): G.L[12*k+g].append(x)
        if k in (4, 8, 12): G.S[12*k].append(lambda k=k: stamp(f'P3 k{k}'))
    for k in range(1, 16):
        g = 12*k if k <= 16-TL else b0 + 6*(k-(16-TL))
        c = chkO(k)
        G.S[g-4].append(lambda t=c[:1]: A.prewait(t))
        G.V[g-4].append(c[0]); G.V[g-3].append(c[1]); G.S[g-1].append(brk(k, c[2]))
    for k in range(16-TL+1, 16): G.put('L', rdW(k), b0 - 4 + 6*(k-(16-TL+1)), b0 + 2 + 6*(k-(16-TL+1)))
    G.put('L', [f'ds_write_b128 v{vRdW}, {ar(64+4*k)} offset:{k*1024}' for k in (0, 3, 1, 4, 2, 5)], b0 + 6*TL + 3, len(M) - 2)
    emit(G.out())
    if stamps: A(f's_mov_b32 s3, s{sCnt}')
    stamp('P3 done')
    assert barsA == barsB, (barsA, barsB)
    A(f's_mov_b32 s{sCnt}, {SPIN_MAX}')
    bar('red')
    AC = 144
    for k in range(6): A(f'ds_read_b128 {vr(RB+4*k)}, v{vRdR} offset:{k*1024}')
    A(f's_cmp_eq_u32 s{sW}, s{sG}')
    for f in range(0, 24, 2): A(f'v_pk_add_f32 {vr(AC+f,2)}, {vr(AC+f,2)}, {vr(RB+f,2)}')
    A('s_cbranch_scc1 L_recv')
    for dd in range(12): A(f'v_cvt_pk_bf16_f32 v{sbd(SB,dd)}, v{AC+2*dd}, v{AC+1+2*dd}')
    for k in range(4): A(f'buffer_store_dwordx4 {vr(SB+4*k)}, v2, {srd(sWS)}, s{sQS} offen offset:{k*1024} sc1')
    if o['fwait']:
        A.wait(vm=A.vm_issued - o['fwait']); A('s_barrier')
    A('s_branch L_fin')
    A.label('L_recv')
    if o['fwait']: A('s_barrier')
    rbase = [80, 96, 112]
    fl = lambda j: [f'buffer_load_dwordx4 {vr(rbase[j]+4*k)}, v2, {srd(sWS)}, s{sFin+j} offen offset:{k*1024} sc1' for k in range(4)]
    stamp('recv start')
    A.vm_done = A.vm_issued
    for j in range(3): emit(fl(j))
    for j in range(3):
        c = tagcheck([rbase[j]+4*k for k in range(4)], f'L_f{j}_slow')
        emit(c); A.label(f'L_f{j}_ok')
        slowpath(f'f{j}', fl(j), c)
        if j < 2:
            for dd in range(12): emit(unp(AC+2*dd, sbd(rbase[j], dd)))
    stamp('final recv')
    for tt in range(3):
        for e in range(2):
            for hp in range(2):
                dd = (e*3+tt)*2 + hp
                emit(unp(AC+2*dd, sbd(rbase[2], dd)))
        d = RB + 4*tt
        for e in range(2):
            for hp in range(2):
                dd = (e*3+tt)*2 + hp
                A(f'v_cvt_pk_bf16_f32 v{d+2*e+hp}, v{AC+2*dd}, v{AC+1+2*dd}')
        A(f'v_permlane16_swap_b32 v{d}, v{d+2}\nv_permlane16_swap_b32 v{d+1}, v{d+3}')
        A(f'buffer_store_dwordx4 {vr(d)}, v{vOut+tt}, {srd(sOUT)}, 0 offen')
    A(f's_or_b32 s{sC}, s{sH}, s{sKH}\ns_cmp_lg_u32 s{sC}, 0\ns_cbranch_scc1 L_fin')
    A(f's_lshl_b32 s{sC}, s{sP}, 7\nv_mov_b32 v8, s{sN}\nv_mov_b32 v9, 0\ns_mov_b64 exec, 1')
    A(f'buffer_store_dword v8, v9, {srd(sWS)}, s{sC} offen sc1')
    A('s_mov_b64 exec, -1')
    A.label('L_fin')
    if stamps:
        A.raw('    s_waitcnt vmcnt(0)')
        A(f's_memtime s[{sM0}:{sM0+1}]\ns_memrealtime s[{sM1}:{sM1+1}]')
        A.raw('    s_waitcnt lgkmcnt(0)')
        A('v_mov_b32 v8, 0')
        vals = ['s100', f's{sM1}'] + [f's{sST+2*k}' for k in range(nst[0])] + [f's{sM0}', f's{sCnt}', 's3']
        for k, s in enumerate(vals): A(f'v_writelane_b32 v8, {s}, {k}')
        A(f's_lshl_b32 s{sC}, s2, 10\ns_add_u32 s{sC}, s{sC}, {WS_ST}\nv_and_b32 v9, 255, v0\nv_lshlrev_b32 v9, 2, v9')
        A(f'buffer_store_dword v8, v9, {srd(sWS)}, s{sC} offen')
    if amp:
        if ampwg is not None: A(f's_cmp_lg_u32 s2, {ampwg}\ns_cbranch_scc1 L_end')
        A(f's_cmp_lg_u32 s{sW}, s{sG}\ns_cbranch_scc1 L_end')
        A.raw('    s_waitcnt vmcnt(0)')
        if amp[1] == 'end': A('s_memrealtime s[74:75]')
        A('s_memrealtime s[76:77]')
        A('s_sub_u32 s72, s74, s72\ns_mul_i32 s72, s72, 10\ns_min_u32 s72, s72, 100000')
        A.label('L_amp')
        A('s_memrealtime s[78:79]')
        A('s_sub_u32 s78, s78, s76\ns_cmp_lt_u32 s78, s72\ns_cbranch_scc1 L_amp')
    A.label('L_end')
    A('s_endpgm')
    for s in slow: A.raw(s)
    A.label('L_last')
    A('s_endpgm')
    A.raw(f'''.section .rodata,"a"
.p2align 6
.amdhsa_kernel {NAME}_kernel
  .amdhsa_next_free_vgpr 256
  .amdhsa_next_free_sgpr 102
  .amdhsa_accum_offset 168
  .amdhsa_group_segment_fixed_size 0
  .amdhsa_kernarg_size 64
  .amdhsa_user_sgpr_count 2
  .amdhsa_user_sgpr_kernarg_segment_ptr 1
  .amdhsa_system_sgpr_workgroup_id_x 1
.end_amdhsa_kernel''')
    txt = A.text()
    import re
    assert max(int(x) for x in re.findall(r'\bv(\d+)\b', txt) + re.findall(r'\bv\[\d+:(\d+)\]', txt)) < 168
    assert max(int(x) for x in re.findall(r'\ba(\d+)\b', txt) + re.findall(r'\ba\[\d+:(\d+)\]', txt)) < 88
    return txt, stn + ['end'], A.nops

def wr(path, stamps=None, **kw):
    t, stn, nops = gen(stamps=stamps, **kw)
    open(path, 'w').write(t)
    if stamps: open(path[:-2] + '.names', 'w').write('\n'.join(stn))
    return t, nops
ST1 = ['Q0 landed', 'Q15 landed', 'K0 landed', 'QK done', 's0', 'O stored', 'vend', 'W landed', 'O first', 'P3 done', 'final recv']
ST2 = ['prologue', 'Q0 landed', 'Q2 landed', 'Q8 landed', 'Q15 landed', 'q ready', 'K0 landed', 'QK done', 'max done', 'pre s0', 's0']
ST3 = ['QK done', 'pre s0', 's0', 'pre s1', 's1', 'pre s2', 's2', 'pre s3', 's3', 'O stored']
ST4 = ['O stored', 'vend', 'W landed', 'O first', 'P3 k4', 'P3 k8', 'P3 k12', 'P3 done', 'recv start', 'final recv']
if __name__ == '__main__':
    t, nops = wr('cdna_kernels/%s.s' % NAME)
    for i, s in enumerate([ST1, ST2, ST3, ST4]): wr(f'k_s{i+1}.s', s)
    print('lines', t.count('\n'), 'nops', nops)
```
